```python
import torch

def _softmax(x, axis=-1):
    return torch.softmax(x, dim=axis)
def _gelu(x):
    return torch.nn.functional.gelu(x, approximate="tanh")
def _silu(x):
    return torch.nn.functional.silu(x)
def _sigmoid(x):
    return torch.sigmoid(x)
def _layernorm(x, axis=-1, eps=1e-5):
    m = x.mean(dim=axis, keepdim=True)
    v = x.var(dim=axis, keepdim=True, unbiased=False)
    return (x - m) / torch.sqrt(v + eps)
def _scatter_add(tgt, idx, src, axis=0):
    return tgt.clone().index_add_(axis, idx, src)
def _segment_sum(src, seg, n):
    out = torch.zeros((n,) + src.shape[1:], dtype=src.dtype)
    return out.index_add_(0, seg, src)
def _pad(x, pw):
    flat = tuple(v for pair in reversed(pw) for v in pair)
    return torch.nn.functional.pad(x, flat)

kernel_name = 'parallel_sum__sliding_local_dilated__mixer_token_mlp__prompt'

def setup_inputs():

    _w = (lambda a: (lambda t: t.to(torch.bfloat16) if t.is_floating_point() else t)(torch.as_tensor(a)))
    def _A_setup():
        B, S, D = 1, 2048, 512
        return {
            "x": _w((lambda *s: torch.randn(*s, dtype=torch.bfloat16) * 0.05)(B, S, D)),
            "wqkv": _w((lambda *s: torch.randn(*s, dtype=torch.bfloat16) * 0.05)(D, 3 * D)),
            "wo": _w((lambda *s: torch.randn(*s, dtype=torch.bfloat16) * 0.05)(D, D)),
        }
    _A_in = _A_setup()

    def _B_setup():
        B, S, D, F = 1, 2048, 512, 1376
        return {
            "x": _w((lambda *s: torch.randn(*s, dtype=torch.bfloat16) * 0.05)(B, S, D)),
            "w1": _w((lambda *s: torch.randn(*s, dtype=torch.bfloat16) * 1.6)(S, F) * (S ** -0.5)),
            "b1": _w((lambda *s: torch.randn(*s, dtype=torch.bfloat16) * 12.8)(F) * 0.02),
            "w2": _w((lambda *s: torch.randn(*s, dtype=torch.bfloat16) * 0.8)(F, S) * (F ** -0.5)),
            "b2": _w((lambda *s: torch.randn(*s, dtype=torch.bfloat16) * 12.8)(S) * 0.02),
        }
    _B_in = _B_setup()

    return {
        "A_x": _A_in["x"],
        "A_wqkv": _A_in["wqkv"],
        "A_wo": _A_in["wo"],
        "B_x": _B_in["x"],
        "B_w1": _B_in["w1"],
        "B_b1": _B_in["b1"],
        "B_w2": _B_in["w2"],
        "B_b2": _B_in["b2"],
    }

def reference(A_x, A_wqkv, A_wo, B_x, B_w1, B_b1, B_w2, B_b2):
    def _A_ref(x, wqkv, wo):
        B, S, D = x.shape
        H = 32; Dh = D // H
        W, dil = 8, 2
        qkv = (lambda x, *d: x.permute(*d))((x @ wqkv).reshape(B, S, 3, H, Dh), 2, 0, 3, 1, 4)
        q, k, v = qkv[0], qkv[1], qkv[2]
        scale = Dh ** -0.5
        pos = torch.arange(S)
        off = torch.arange(W) * dil
        idx = pos[:, None] - off[None, :]
        mask = idx >= 0
        idx_c = torch.where(mask, idx, 0).reshape(-1)
        kg = k[:, :, idx_c, :].reshape(B, H, S, W, Dh)
        vg = v[:, :, idx_c, :].reshape(B, H, S, W, Dh)
        logits = torch.einsum("bhsd,bhswd->bhsw", q, kg) * scale
        logits = torch.where(mask[None, None, :, :], logits, -1e9)
        attn = _softmax(logits, axis=-1)
        o = torch.einsum("bhsw,bhswd->bhsd", attn, vg)
        return (lambda x, *d: x.permute(*d))(o, 0, 2, 1, 3).reshape(B, S, D) @ wo

    def _B_ref(x, w1, b1, w2, b2):
        B, S, D = x.shape
        h = _layernorm(x, axis=-1)
        u = torch.einsum("bsd,sf->bdf", h, w1) + b1
        u = _gelu(u)
        y = torch.einsum("bdf,fs->bds", u, w2) + b2
        return (lambda x, *d: x.permute(*d))(y, 0, 2, 1)

    x = A_x
    xn = _layernorm(x, axis=-1)
    return x + _A_ref(xn, A_wqkv, A_wo) + _B_ref(xn, B_w1, B_b1, B_w2, B_b2)
```

```python
import re

TRANS = ("v_exp_f32", "v_log_f32", "v_rcp_f32", "v_rsq_f32", "v_sqrt_f32", "v_sin_f32", "v_cos_f32")
MFMA_PASSES = {
    "v_mfma_f32_32x32x16_bf16": 8, "v_mfma_f32_16x16x32_bf16": 4, "v_mfma_f32_16x16x16_bf16": 4,
    "v_mfma_f32_32x32x8_bf16": 8,
}
RAW_VALU = {2: 5, 4: 8, 8: 12, 16: 20}
OVL_C = {2: 4, 4: 6, 8: 10, 16: 18}
WAR_C = {2: 1, 4: 3, 8: 7, 16: 15}

def expand(op):
    op = op.strip()
    m = re.fullmatch(r"(-|abs\()?([vsa])\[(\d+):(\d+)\]\)?", op)
    if m: return [m.group(2) + str(i) for i in range(int(m.group(3)), int(m.group(4)) + 1)]
    m = re.fullmatch(r"(-|abs\(|-abs\()?([vsa])(\d+)\)?", op)
    if m: return [m.group(2) + m.group(3)]
    if op in ("vcc", "vcc_lo", "vcc_hi"): return ["vcc"]
    if op in ("m0", "exec", "scc"): return [op]
    return []

class Ins:
    __slots__ = ("text", "op", "ops", "mods", "kind", "reads", "writes", "nops", "label", "target")
    def __init__(self, text):
        self.text = text; self.nops = 0; self.label = None; self.target = None
        t = text.split(";")[0].strip()
        self.reads = []; self.writes = []; self.kind = "other"; self.mods = ""
        if t.endswith(":"):
            self.kind = "label"; self.label = t[:-1]; self.op = ""; self.ops = []; return
        if not t or t.startswith("."):
            self.kind = "directive"; self.op = ""; self.ops = []; return
        parts = t.split(None, 1)
        self.op = parts[0]
        rest = parts[1] if len(parts) > 1 else ""
        ops = []; cur = ""; depth = 0
        for ch in rest:
            if ch in "[(": depth += 1
            if ch in "])": depth -= 1
            if ch == "," and depth == 0: ops.append(cur.strip()); cur = ""
            else: cur += ch
        if cur.strip(): ops.append(cur.strip())
        if ops:
            sp = ops[-1].split()
            if len(sp) > 1:
                ops[-1] = sp[0]; self.mods = " ".join(sp[1:])
        self.ops = ops
        self.classify()
    def classify(self):
        op, ops = self.op, self.ops
        E = expand
        if op.startswith("v_mfma"):
            self.kind = "mfma"; self.writes = E(ops[0]); self.reads = E(ops[1]) + E(ops[2]) + E(ops[3])
        elif op.startswith("v_cmp"):
            self.kind = "valu"; self.writes = E(ops[0]); self.reads = sum((E(o) for o in ops[1:]), [])
        elif op.startswith("v_permlane") and "swap" in op:
            self.kind = "valu"; self.writes = E(ops[0]) + E(ops[1]); self.reads = list(self.writes)
        elif op.startswith("v_"):
            self.kind = "valu"; self.writes = E(ops[0]); self.reads = sum((E(o) for o in ops[1:]), [])
            if op.startswith(("v_fmac", "v_dot2c", "v_pk_fmac", "v_writelane")): self.reads += self.writes
            if op.startswith(("v_add_co", "v_sub_co", "v_addc_co", "v_subb_co")):
                self.writes = E(ops[0]) + E(ops[1]); self.reads = sum((E(o) for o in ops[2:]), [])
            if "dpp" in op or "row_" in self.mods or "quad_perm" in self.mods: self.reads += self.writes
            if op.startswith("v_cndmask") and len(ops) == 3: self.reads.append("vcc")
        elif op.startswith("buffer_load") or op.startswith("global_load"):
            self.kind = "vmem"
            if "lds" in self.mods.split() or "_lds_" in op:
                self.reads = sum((E(o) for o in ops), []) + ["m0"]; self.writes = []
            else:
                self.writes = E(ops[0]); self.reads = sum((E(o) for o in ops[1:]), [])
        elif op.startswith(("buffer_store", "global_store", "buffer_atomic", "global_atomic")):
            self.kind = "vmem"; self.reads = sum((E(o) for o in ops), [])
        elif op.startswith(("buffer_inv", "buffer_wbl2")):
            self.kind = "vmem"
        elif op.startswith("ds_read") or op.startswith("ds_bpermute") or op.startswith("ds_swizzle"):
            self.kind = "ds"; self.writes = E(ops[0]); self.reads = sum((E(o) for o in ops[1:]), [])
        elif op.startswith("ds_write"):
            self.kind = "ds"; self.reads = sum((E(o) for o in ops), [])
        elif op.startswith(("s_cbranch", "s_branch")):
            self.kind = "branch"; self.target = ops[0]
        elif op == "s_nop":
            self.kind = "nop"
        elif op.startswith("s_"):
            self.kind = "salu"
            if op.startswith(("s_cmp", "s_waitcnt", "s_barrier", "s_endpgm", "s_setprio", "s_sleep", "s_bitcmp")):
                self.reads = sum((E(o) for o in ops), [])
            else:
                self.writes = E(ops[0]) if ops else []; self.reads = sum((E(o) for o in ops[1:]), [])
        else:
            raise ValueError("unknown instruction: " + self.text)

class State:
    def __init__(self): self.d = {}
    def copy(self):
        s = State(); s.d = dict(self.d); return s
    def tick(self, n):
        for k in list(self.d):
            v = self.d[k] + n
            if v > 24: del self.d[k]
            else: self.d[k] = v
    def merge(self, o):
        for k, v in o.d.items():
            if k not in self.d or v < self.d[k]: self.d[k] = v
    def age(self, key): return self.d.get(key, 1000)

def need(ins, st):
    n = 0
    def req(key, w):
        nonlocal n
        a = st.age(key)
        if a < w: n = max(n, w - a)
    k = ins.kind
    if k == "mfma":
        D = ins.writes; A = expand(ins.ops[1]); B = expand(ins.ops[2]); C = expand(ins.ops[3])
        p = MFMA_PASSES[ins.op]
        for r in A + B + C: req(("valu_w", r), 2)
        for key in list(st.d):
            if key[0] == "mfma_w":
                _, r, pp, rng, opn = key
                if r in A or r in B: req(key, RAW_VALU[pp])
                if r in C or r in D:
                    same = (tuple(C) == rng and tuple(D) == rng and opn == ins.op) if C else False
                    if not same: req(key, OVL_C[pp])
    elif k == "valu":
        isdpp = "dpp" in ins.op or "row_" in ins.mods or "quad_perm" in ins.mods
        isperm = ins.op.startswith("v_permlane")
        isrl = ins.op.startswith(("v_readlane", "v_readfirstlane"))
        for key in list(st.d):
            if key[0] == "mfma_w":
                if key[1] in ins.reads or key[1] in ins.writes: req(key, RAW_VALU[key[2]])
            elif key[0] == "mfma_c":
                if key[1] in ins.writes: req(key, WAR_C[key[2]])
        for r in ins.reads:
            if r[0] == "v" and r != "vcc":
                req(("trans_w", r), 1)
                if isdpp or isperm: req(("valu_w", r), 2)
                if isrl: req(("valu_w", r), 1)
            elif r[0] == "s" or r == "vcc":
                req(("valu_sgpr_w", r), 4 if ins.op.startswith(("v_readlane", "v_writelane")) else 2)
        for r in ins.writes: req(("store_data", r), 2)
    elif k in ("vmem", "ds"):
        for key in list(st.d):
            if key[0] == "mfma_w":
                if key[1] in ins.reads or key[1] in ins.writes: req(key, RAW_VALU[key[2]])
        for r in ins.reads:
            if r[0] == "s" or r == "vcc": req(("valu_sgpr_w", r), 5)
            if r == "m0": req(("salu_m0",), 1)
        for r in ins.writes: req(("store_data", r), 2)
    elif k == "salu" or k == "branch":
        for r in ins.reads:
            if r[0] == "s" or r == "vcc": req(("valu_sgpr_w", r), 1)
    return n

def apply(ins, st):
    k = ins.kind
    if k in ("label", "directive"): return
    if k == "nop":
        st.tick(int(ins.ops[0], 0) + 1); return
    st.tick(1)
    if k == "mfma":
        p = MFMA_PASSES[ins.op]; rng = tuple(ins.writes)
        for key in [key for key in st.d if key[0] == "mfma_w" and key[1] in ins.writes]: del st.d[key]
        for r in ins.writes: st.d[("mfma_w", r, p, rng, ins.op)] = 0
        for r in expand(ins.ops[3]): st.d[("mfma_c", r, p)] = 0
    elif k == "valu":
        for r in ins.writes:
            if r[0] == "v" and r != "vcc":
                st.d[("valu_w", r)] = 0
                if ins.op.replace("_e32", "").replace("_e64", "") in TRANS: st.d[("trans_w", r)] = 0
                else: st.d.pop(("trans_w", r), None)
                for key in [key for key in st.d if key[0] == "mfma_w" and key[1] == r]: del st.d[key]
            else:
                st.d[("valu_sgpr_w", r)] = 0
    elif k == "salu":
        if "m0" in ins.writes: st.d[("salu_m0",)] = 0
        for r in ins.writes: st.d.pop(("valu_sgpr_w", r), None)
    elif k == "vmem":
        if ins.op.endswith(("x4", "x3")) and "store" in ins.op:
            for r in expand(ins.ops[0] if ins.op.startswith("buffer") else ins.ops[1]): st.d[("store_data", r)] = 0
        for r in ins.writes:
            st.d.pop(("valu_w", r), None)
    elif k == "ds":
        for r in ins.writes: st.d.pop(("valu_w", r), None)

def hazard_pass(inss):
    labels = {i.label: n for n, i in enumerate(inss) if i.kind == "label"}
    changed = True; rounds = 0
    while changed:
        changed = False; rounds += 1
        assert rounds < 20
        entry = {}
        for it in range(3):
            st = State()
            for n, ins in enumerate(inss):
                if ins.kind == "label":
                    if ins.label in entry: st.merge(entry[ins.label])
                    continue
                if ins.kind == "directive": continue
                st.tick(ins.nops)
                w = need(ins, st)
                if w > 0:
                    ins.nops += w; st.tick(w); changed = True
                apply(ins, st)
                if ins.kind == "branch":
                    e = entry.setdefault(ins.target, State()); e.merge(st)
                    if ins.op == "s_branch": st = State()
                if ins.op == "s_endpgm": st = State()
    return inss

class Asm:
    def __init__(self): self.lines = []
    def __call__(self, text):
        for l in text.strip("\n").split("\n"):
            l = l.strip()
            if not l or l.startswith(";"): continue
            self.lines.append(Ins(l))
    def label(self, name): self.lines.append(Ins(name + ":"))
    def finish(self):
        hazard_pass(self.lines)
        out = []
        for i in self.lines:
            n = i.nops
            while n > 0:
                k = min(n, 16); out.append("  s_nop %d" % (k - 1)); n -= k
            out.append(i.text if i.kind == "label" else "  " + i.text)
        return "\n".join(out) + "\n"
    def count_nops(self): return sum(i.nops for i in self.lines)
```

```python
import struct
from asmlib import Asm
HB_OFF = 0x000000; HB_BLK = 2048 * 96; HB_SIZE = 11 * HB_BLK
OT_OFF = 0x400000; OT_SIZE = 512 * 4096
SRD3 = "0x00020000"
def S(b, n=4): return f"s[{b}:{b+n-1}]"
def V(b, n=None): return f"v{b}" if n is None else f"v[{b}:{b+n-1}]"
def f2u(x): return struct.unpack("<I", struct.pack("<f", x))[0]
def srd(a, base, plo, phi, size, off=0):
    if off:
        a(f"s_add_u32 s{base}, s{plo}, {off}")
        a(f"s_addc_u32 s{base+1}, s{phi}, 0")
    else:
        a(f"s_mov_b32 s{base}, s{plo}")
        a(f"s_mov_b32 s{base+1}, s{phi}")
    a(f"s_mov_b32 s{base+2}, {size}")
    a(f"s_mov_b32 s{base+3}, {SRD3}")

class VM:
    def __init__(self, a): self.a = a; self.q = []
    def issue(self, tag): self.q.append(tag)
    def wait(self, tag):
        idx = max(i for i, t in enumerate(self.q) if t == tag)
        n = len(self.q) - 1 - idx
        self.a(f"s_waitcnt vmcnt({n})")
        self.q = self.q[idx+1:]

def xrow_reduce(a, regs, tmps, op="v_add_f32"):
    for sw in ("v_permlane16_swap_b32", "v_permlane32_swap_b32"):
        for r, t in zip(regs, tmps): a(f"v_mov_b32 v{t}, v{r}")
        for r, t in zip(regs, tmps): a(f"{sw} v{r}, v{t}")
        for r, t in zip(regs, tmps): a(f"{op} v{r}, v{r}, v{t}")

def wave_reduce(a, regs, tmps):
    for mod in ("quad_perm:[1,0,3,2]", "quad_perm:[2,3,0,1]", "row_half_mirror", "row_mirror"):
        for r in regs: a(f"v_add_f32_dpp v{r}, v{r}, v{r} {mod} row_mask:0xf bank_mask:0xf")
    xrow_reduce(a, regs, tmps)

def kernel_a():
    a = Asm()
    NS, PD, STG = 4, 3, 36864
    STAT = NS * STG
    LDS = STAT + 1024
    EPS = 1e-5
    sX, sWq, sHB, sOT = 8, 12, 16, 20
    sW, sRb, sHg, sT, sT2, sKX, sKW0, sKW1, sKW2, sMX, sMWb, sBias, sC = 28, 29, 30, 31, 32, 33, 34, 35, 36, 37, 38, 39, 40
    sM0row, sOdd, sC0, sC1 = 42, 44, 46, 48
    sOnes = 50
    vLane, vT, vT2, vT3 = 1, 2, 3, 4
    vX0 = 5
    vW0 = 8
    vRX0, vRX1, vRW = 10, 11, 12
    vCX0, vCX1, vCW = 13, 14, 15
    vSum, vSq, vSum0, vSq0 = 16, 17, 18, 19
    vOnes = 20
    vHo = 21
    vOo = 22
    vSel = 24
    vAQ, vAK, vAV = 32, 52, 72
    vF = [96, 128]
    vH = 160
    vm = VM(a)
    a("s_cmp_ge_u32 s2, 256")
    a("s_cbranch_scc1 A_end")
    a("s_load_dwordx2 s[4:5], s[0:1], 0")
    a("s_load_dwordx2 s[6:7], s[0:1], 8")
    a("s_load_dwordx2 s[24:25], s[0:1], 80")
    a(f"v_and_b32 v{vLane}, 63, v0")
    a(f"v_lshrrev_b32 v{vT}, 6, v0")
    a(f"v_readfirstlane_b32 s{sW}, v{vT}")
    a(f"s_and_b32 s{sT}, s2, 7")
    a(f"s_lshr_b32 s{sT2}, s2, 3")
    a(f"s_lshr_b32 s{sRb}, s{sT2}, 3")
    a(f"s_lshl_b32 s{sT}, s{sT}, 2")
    a(f"s_add_u32 s{sRb}, s{sRb}, s{sT}")
    a(f"s_and_b32 s{sHg}, s{sT2}, 7")
    a(f"s_lshl_b32 s{sT}, s{sRb}, 6")
    a(f"s_lshl_b32 s{sT2}, s{sHg}, 3")
    a(f"s_add_u32 s{sT}, s{sT}, s{sT2}")
    a(f"s_lshl_b32 s{sT2}, s{sW}, 1")
    a(f"s_add_u32 s{sT}, s{sT}, s{sT2}")
    a(f"s_lshl_b32 s{sT2}, s{sT}, 10")
    a(f"v_lshlrev_b32 v{vT}, 4, v{vLane}")
    a(f"v_add_u32 v{vT}, s{sT2}, v{vT}")
    vHx = 23
    a(f"v_mov_b32 v{vHx}, v{vT}")
    a(f"v_mul_u32_u24 v{vT2}, 43, v{vLane}")
    a(f"v_lshrrev_b32 v{vT2}, 8, v{vT2}")
    a(f"v_mul_u32_u24 v{vT3}, 6, v{vT2}")
    a(f"v_sub_u32 v{vT3}, v{vLane}, v{vT3}")
    a(f"s_mov_b32 s{sT2}, {HB_BLK}")
    a(f"v_mul_lo_u32 v{vHo}, v{vT2}, s{sT2}")
    a(f"v_lshl_add_u32 v{vHo}, v{vT3}, 4, v{vHo}")
    a(f"s_mul_i32 s{sT2}, s{sT}, 96")
    a(f"v_add_u32 v{vHo}, s{sT2}, v{vHo}")
    a(f"v_lshrrev_b32 v{vT}, 3, v{vLane}")
    a(f"s_lshl_b32 s{sT}, s{sW}, 3")
    a(f"s_lshl_b32 s{sT2}, s{sRb}, 6")
    a(f"s_add_u32 s{sT}, s{sT}, s{sT2}")
    a(f"s_sub_u32 s{sT}, s{sT}, 16")
    a(f"v_add_u32 v{vT}, s{sT}, v{vT}")
    a(f"v_lshlrev_b32 v{vT}, 10, v{vT}")
    a(f"v_lshrrev_b32 v{vT2}, 4, v{vLane}")
    a(f"s_and_b32 s{sT}, s{sW}, 1")
    a(f"s_lshl_b32 s{sT}, s{sT}, 2")
    a(f"v_add_u32 v{vT2}, s{sT}, v{vT2}")
    a(f"v_and_b32 v{vT3}, 7, v{vLane}")
    a(f"v_xor_b32 v{vT2}, v{vT2}, v{vT3}")
    a(f"v_lshl_add_u32 v{vX0}, v{vT2}, 4, v{vT}")
    a(f"v_add_u32 v{vX0+1}, 32768, v{vX0}")
    a(f"v_add_u32 v{vX0+2}, 65536, v{vX0}")
    a(f"v_mov_b32 v{vT}, 0x40000000")
    a(f"s_cmp_ge_u32 s{sW}, 2")
    a(f"s_cselect_b64 {S(sC0,2)}, -1, 0")
    a(f"v_cndmask_b32 v{vX0+2}, v{vX0+2}, v{vT}, {S(sC0,2)}")
    a(f"s_lshl_b32 s{sMX}, s{sW}, 10")
    a(f"v_lshrrev_b32 v{vT}, 3, v{vLane}")
    a(f"s_lshl_b32 s{sT}, s{sW}, 4")
    a(f"v_add_u32 v{vT}, s{sT}, v{vT}")
    a(f"s_movk_i32 s{sT}, 3072")
    a(f"v_mul_lo_u32 v{vT}, v{vT}, s{sT}")
    a(f"s_lshl_b32 s{sT}, s{sHg}, 7")
    a(f"v_add_u32 v{vT}, s{sT}, v{vT}")
    a(f"v_bfe_u32 v{vT2}, v{vLane}, 4, 1")
    a(f"v_lshlrev_b32 v{vT2}, 1, v{vT2}")
    a(f"v_xor_b32 v{vT2}, v{vT2}, v{vT3}")
    a(f"v_lshl_add_u32 v{vW0}, v{vT2}, 4, v{vT}")
    a(f"v_xor_b32 v{vT2}, 4, v{vT2}")
    a(f"v_lshl_add_u32 v{vW0+1}, v{vT2}, 4, v{vT}")
    a(f"v_add_u32 v{vW0+1}, {8*3072}, v{vW0+1}")
    a(f"s_lshl_b32 s{sMWb}, s{sW}, 11")
    a(f"s_add_u32 s{sMWb}, s{sMWb}, 12288")
    a(f"v_and_b32 v{vT}, 15, v{vLane}")
    a(f"v_lshrrev_b32 v{vT2}, 4, v{vLane}")
    a(f"v_lshrrev_b32 v{vT3}, 1, v{vT}")
    a(f"v_xor_b32 v{vT3}, v{vT3}, v{vT2}")
    a(f"v_lshlrev_b32 v{vRX0}, 7, v{vT}")
    a(f"v_lshl_add_u32 v{vRX0}, v{vT3}, 4, v{vRX0}")
    a(f"v_xor_b32 v{vRX1}, 64, v{vRX0}")
    a(f"v_bfe_u32 v{vT}, v{vLane}, 2, 2")
    a(f"v_lshl_add_u32 v{vT3}, v{vT2}, 3, v{vT}")
    a(f"v_lshlrev_b32 v{vRW}, 7, v{vT3}")
    a(f"v_lshrrev_b32 v{vT}, 1, v{vT}")
    a(f"v_lshlrev_b32 v{vT}, 1, v{vT}")
    a(f"v_and_b32 v{vT2}, 1, v{vT2}")
    a(f"v_lshl_add_u32 v{vT}, v{vT2}, 2, v{vT}")
    a(f"v_bfe_u32 v{vT2}, v{vLane}, 1, 1")
    a(f"s_lshl_b32 s{sT}, s{sW}, 1")
    a(f"v_add_u32 v{vT2}, s{sT}, v{vT2}")
    a(f"v_xor_b32 v{vT}, v{vT}, v{vT2}")
    a(f"v_lshl_add_u32 v{vRW}, v{vT}, 4, v{vRW}")
    a(f"v_and_b32 v{vT}, 1, v{vLane}")
    a(f"v_lshl_add_u32 v{vRW}, v{vT}, 3, v{vRW}")
    a(f"v_add_u32 v{vRW}, 12288, v{vRW}")
    a(f"v_and_b32 v{vT}, 15, v{vLane}")
    a(f"s_lshl_b32 s{sT}, s{sHg}, 6")
    a(f"s_lshl_b32 s{sT2}, s{sW}, 4")
    a(f"s_add_u32 s{sT}, s{sT}, s{sT2}")
    a(f"v_add_u32 v{vT}, s{sT}, v{vT}")
    a(f"v_lshlrev_b32 v{vOo}, 12, v{vT}")
    a(f"v_lshrrev_b32 v{vT2}, 4, v{vLane}")
    a(f"v_lshl_add_u32 v{vOo}, v{vT2}, 3, v{vOo}")
    a(f"s_lshl_b32 s{sT}, s{sRb}, 7")
    a(f"v_add_u32 v{vOo}, s{sT}, v{vOo}")
    a(f"v_and_b32 v{vT}, 15, v{vLane}")
    a(f"v_cmp_eq_u32 {S(sM0row,2)}, 0, v{vT}")
    a(f"v_and_b32 v{vT3}, 1, v{vLane}")
    a(f"v_cmp_eq_u32 {S(sOdd,2)}, 1, v{vT3}")
    a(f"v_lshl_add_u32 v{vT2}, v{vT2}, 2, v{vT3}")
    a(f"v_cmp_gt_u32 {S(sC0,2)}, v{vT2}, v{vT}")
    a(f"v_add_u32 v{vT2}, 2, v{vT2}")
    a(f"v_cmp_gt_u32 {S(sC1,2)}, v{vT2}, v{vT}")
    a(f"v_mov_b32 v{vT}, 0x0c0c0100")
    a(f"v_mov_b32 v{vT2}, 0x01000c0c")
    a(f"v_cndmask_b32 v{vT}, v{vT}, v{vT2}, {S(sOdd,2)}")
    a(f"v_mov_b32 v{vT3}, 0x0c0c0c0c")
    a(f"v_cndmask_b32 v{vSel+0}, v{vT3}, v{vT}, {S(sC0,2)}")
    a(f"v_cndmask_b32 v{vSel+2}, v{vT}, v{vT3}, {S(sC0,2)}")
    a(f"v_mov_b32 v{vT}, 0x0c0c0302")
    a(f"v_mov_b32 v{vT2}, 0x03020c0c")
    a(f"v_cndmask_b32 v{vT}, v{vT}, v{vT2}, {S(sOdd,2)}")
    a(f"v_cndmask_b32 v{vSel+1}, v{vT3}, v{vT}, {S(sC1,2)}")
    a(f"v_cndmask_b32 v{vSel+3}, v{vT}, v{vT3}, {S(sC1,2)}")
    a(f"v_mov_b32 v{vOnes}, 0x3f803f80")
    a(f"s_mov_b32 s{sOnes}, 0x3f803f80")
    for i in range(60): a(f"v_mov_b32 v{vAQ+i}, 0")
    for r in (vSum, vSq, vSum0, vSq0): a(f"v_mov_b32 v{r}, 0")
    a(f"s_cmp_eq_u32 s{sRb}, 0")
    a(f"s_cselect_b32 s{sBias}, {f2u(-1e30):#x}, 0")
    a("s_waitcnt lgkmcnt(0)")
    srd(a, sX, 4, 5, 2097152)
    srd(a, sWq, 6, 7, 512 * 3072)
    srd(a, sHB, 24, 25, HB_SIZE, HB_OFF)
    srd(a, sOT, 24, 25, OT_SIZE, OT_OFF)
    a(f"buffer_load_dwordx4 {V(vH,4)}, v{vHx}, {S(sX)}, 0 offen"); vm.issue("h")
    a(f"buffer_load_dwordx4 {V(vH+4,4)}, v{vHx}, {S(sX)}, 0 offen offset:1024"); vm.issue("h")
    def dma(st):
        base = (st % NS) * STG
        a(f"s_mov_b32 s{sKX}, {st*128}")
        a(f"s_mov_b32 s{sKW0}, {st*64*3072}")
        a(f"s_mov_b32 s{sKW1}, {st*64*3072+1024}")
        a(f"s_mov_b32 s{sKW2}, {st*64*3072+2048}")
        for jj in range(3):
            a(f"s_add_u32 m0, s{sMX}, {base + jj*4096}")
            a(f"buffer_load_dwordx4 v{vX0+jj}, {S(sX)}, s{sKX} offen lds"); vm.issue(("st", st))
        for m, sk in enumerate((sKW0, sKW1, sKW2)):
            for e in range(2):
                a(f"s_add_u32 m0, s{sMWb}, {base + m*8192 + e*1024}")
                a(f"buffer_load_dwordx4 v{vW0+e}, {S(sWq)}, s{sk} offen lds"); vm.issue(("st", st))
    for st in range(PD): dma(st)
    vm.wait("h")
    E = [vH + 8, vH + 16]
    R = [vH + 24, vH + 25]
    Tm = [vH + 26, vH + 27]
    M = [vH + 28, vH + 29]
    for k in range(2):
        for i in range(4):
            a(f"v_lshlrev_b32 v{E[k]+2*i}, 16, v{vH+4*k+i}")
            a(f"v_and_b32 v{E[k]+2*i+1}, 0xffff0000, v{vH+4*k+i}")
    def ln_pass(out_pack):
        for k in range(2):
            a(f"v_add_f32 v{R[k]}, v{E[k]}, v{E[k]+1}")
            for i in range(2, 8): a(f"v_add_f32 v{R[k]}, v{R[k]}, v{E[k]+i}")
        wave_reduce(a, R, Tm)
        for k in range(2): a(f"v_mul_f32 v{M[k]}, {f2u(1/512):#x}, v{R[k]}")
        for k in range(2):
            for i in range(8): a(f"v_sub_f32 v{E[k]+i}, v{E[k]+i}, v{M[k]}")
        for k in range(2):
            a(f"v_mul_f32 v{R[k]}, v{E[k]}, v{E[k]}")
            for i in range(1, 8): a(f"v_fmac_f32 v{R[k]}, v{E[k]+i}, v{E[k]+i}")
        wave_reduce(a, R, Tm)
        a(f"v_mov_b32 v{vT}, {f2u(EPS):#x}")
        for k in range(2): a(f"v_fmac_f32 v{vT}, {f2u(1/512):#x}, v{R[k]}") if False else None
        for k in range(2):
            a(f"v_mov_b32 v{M[k]}, {f2u(EPS):#x}")
            a(f"v_fmac_f32 v{M[k]}, {f2u(1/512):#x}, v{R[k]}")
        for k in range(2): a(f"v_rsq_f32 v{M[k]}, v{M[k]}")
        for k in range(2):
            for i in range(8): a(f"v_mul_f32 v{E[k]+i}, v{E[k]+i}, v{M[k]}")
        for k in range(2):
            for i in range(4): a(f"v_cvt_pk_bf16_f32 v{out_pack+4*k+i}, v{E[k]+2*i}, v{E[k]+2*i+1}")
    ln_pass(vH)
    for k in range(2):
        for i in range(4):
            a(f"v_lshlrev_b32 v{E[k]+2*i}, 16, v{vH+4*k+i}")
            a(f"v_and_b32 v{E[k]+2*i+1}, 0xffff0000, v{vH+4*k+i}")
    ln_pass(vH)
    a(f"buffer_store_dwordx4 {V(vH,4)}, v{vHo}, {S(sHB)}, 0 offen"); vm.issue("hs")
    a(f"buffer_store_dwordx4 {V(vH+4,4)}, v{vHo}, {S(sHB)}, 0 offen offset:96"); vm.issue("hs")
    for w in range(1, 4):
        a(f"s_cmp_eq_u32 s{sW}, {w}")
        a(f"s_cbranch_scc1 A_main{w}")
    vm_save = list(vm.q)
    for w in range(4):
        vm.q = list(vm_save)
        a.label(f"A_main{w}")
        own = [w + 1] + ([0] if w == 0 else [])
        for st in range(8):
            base = (st % NS) * STG
            vm.wait(("st", st))
            a("s_barrier")
            a(f"v_add_u32 v{vCX0}, {base}, v{vRX0}")
            a(f"v_add_u32 v{vCX1}, {base}, v{vRX1}")
            a(f"v_add_u32 v{vCW}, {base}, v{vRW}")
            def reads(kk):
                F = vF[kk]
                for m in range(3):
                    a(f"ds_read_b64_tr_b16 {V(F+20+4*m,2)}, v{vCW} offset:{m*8192+kk*4096}")
                    a(f"ds_read_b64_tr_b16 {V(F+20+4*m+2,2)}, v{vCW} offset:{m*8192+kk*4096+512}")
                for t in range(5):
                    a(f"ds_read_b128 {V(F+4*t,4)}, v{vCX0 if kk == 0 else vCX1} offset:{t*2048}")
            def compute(kk):
                F = vF[kk]
                for i in range(4):
                    a(f"v_cndmask_b32 v{F+i}, v{F+i}, v{vOnes}, {S(sM0row,2)}")
                mf = []
                for t in (1, 2, 3, 4, 0):
                    mf.append(f"v_mfma_f32_16x16x32_bf16 {V(vAQ+4*t,4)}, {V(F+20,4)}, {V(F+4*t,4)}, {V(vAQ+4*t,4)}")
                    mf.append(f"v_mfma_f32_16x16x32_bf16 {V(vAK+4*t,4)}, {V(F+24,4)}, {V(F+4*t,4)}, {V(vAK+4*t,4)}")
                    mf.append(f"v_mfma_f32_16x16x32_bf16 {V(vAV+4*t,4)}, {V(F+4*t,4)}, {V(F+28,4)}, {V(vAV+4*t,4)}")
                dots = []
                for t in own:
                    su, sq = (vSum, vSq) if t != 0 else (vSum0, vSq0)
                    for i in range(4):
                        dots.append(f"v_dot2_f32_bf16 v{su}, v{F+4*t+i}, s{sOnes}, v{su}")
                        dots.append(f"v_dot2_f32_bf16 v{sq}, v{F+4*t+i}, v{F+4*t+i}, v{sq}")
                di = 0
                for i, m_ in enumerate(mf):
                    a(m_)
                    if di < len(dots):
                        a(dots[di]); di += 1
                        if len(dots) > 8 and i < 1: a(dots[di]); di += 1
                while di < len(dots): a(dots[di]); di += 1
            reads(0)
            if st + PD < 8: dma(st + PD)
            a("s_waitcnt lgkmcnt(0)")
            reads(1)
            compute(0)
            a("s_waitcnt lgkmcnt(0)")
            compute(1)
        regs = [vSum, vSq] + ([vSum0, vSq0] if w == 0 else [])
        tm = [vF[0] + i for i in range(len(regs))]
        xrow_reduce(a, regs, tm)
        for t in own:
            su, sq = (vSum, vSq) if t != 0 else (vSum0, vSq0)
            a(f"v_mul_f32 v{su}, {f2u(1/512):#x}, v{su}")
            a(f"v_mul_f32 v{sq}, {f2u(1/512):#x}, v{sq}")
            a(f"v_fma_f32 v{sq}, -v{su}, v{su}, v{sq}")
            a(f"v_max_f32 v{sq}, 0, v{sq}")
            a(f"v_add_f32 v{sq}, {f2u(EPS):#x}, v{sq}")
            a(f"v_rsq_f32 v{sq}, v{sq}")
            a(f"v_mul_f32 v{su}, v{su}, v{sq}")
            a(f"v_sub_f32 v{su}, 0, v{su}")
            a(f"v_and_b32 v{vT}, 15, v{vLane}")
            a(f"v_lshlrev_b32 v{vT}, 2, v{vT}")
            a(f"v_add_u32 v{vT}, {STAT + 64*t}, v{vT}")
            a(f"ds_write_b32 v{vT}, v{sq}")
            a(f"ds_write_b32 v{vT}, v{su} offset:512")
        if w < 3: a("s_branch A_epi")
    a.label("A_epi")
    vCsQ, vCsK, vCsV = 160, 164, 168
    for r in range(4):
        a(f"v_mov_b32_dpp v{vCsQ+r}, v{vAQ+r} row_newbcast:0 row_mask:0xf bank_mask:0xf")
        a(f"v_mov_b32_dpp v{vCsK+r}, v{vAK+r} row_newbcast:0 row_mask:0xf bank_mask:0xf")
    a(f"v_mov_b32 v{vCsV}, v{vAV}")
    a(f"v_mov_b32 v{vT}, v{vCsV}")
    a(f"v_permlane16_swap_b32 v{vCsV}, v{vT}")
    a(f"v_mov_b32 v{vT}, v{vCsV}")
    a(f"v_permlane32_swap_b32 v{vCsV}, v{vT}")
    a("s_waitcnt lgkmcnt(0)")
    a("s_barrier")
    vaL, vbL = 172, 177
    vaV, vbV = 96, 116
    a(f"v_and_b32 v{vT}, 15, v{vLane}")
    a(f"v_lshlrev_b32 v{vT}, 2, v{vT}")
    a(f"v_add_u32 v{vT}, {STAT}, v{vT}")
    a(f"v_lshrrev_b32 v{vT2}, 4, v{vLane}")
    a(f"v_lshlrev_b32 v{vT2}, 4, v{vT2}")
    a(f"v_add_u32 v{vT2}, {STAT}, v{vT2}")
    for t in range(5):
        a(f"ds_read_b32 v{vaL+t}, v{vT} offset:{64*t}")
        a(f"ds_read_b32 v{vbL+t}, v{vT} offset:{64*t+512}")
    a("s_waitcnt lgkmcnt(0)")
    for t in range(5):
        a(f"ds_read_b128 {V(vaV+4*t,4)}, v{vT2} offset:{64*t}")
        a(f"ds_read_b128 {V(vbV+4*t,4)}, v{vT2} offset:{64*t+512}")
    vQb, vKb, vVb = 184, 194, 204
    vTm = 216
    for (acc, cs, dst, tiles) in ((vAQ, vCsQ, vQb, range(1, 5)), (vAK, vCsK, vKb, range(5))):
        for t in tiles:
            for r in range(4):
                a(f"v_mul_f32 v{vTm+r}, v{vbL+t}, v{cs+r}")
            for r in range(4):
                a(f"v_fma_f32 v{acc+4*t+r}, v{vaL+t}, v{acc+4*t+r}, v{vTm+r}")
            a(f"v_cvt_pk_bf16_f32 v{dst+2*t}, v{acc+4*t}, v{acc+4*t+1}")
            a(f"v_cvt_pk_bf16_f32 v{dst+2*t+1}, v{acc+4*t+2}, v{acc+4*t+3}")
    vSP, vSC = vAQ, vAK
    for t in range(1, 5):
        a(f"v_mfma_f32_16x16x16_bf16 {V(vSP+4*t,4)}, {V(vKb+2*(t-1),2)}, {V(vQb+2*t,2)}, 0")
        a(f"v_mfma_f32_16x16x16_bf16 {V(vSC+4*t,4)}, {V(vKb+2*t,2)}, {V(vQb+2*t,2)}, 0")
    a("s_waitcnt lgkmcnt(0)")
    for t in range(5):
        for r in range(4):
            a(f"v_mul_f32 v{vTm+r}, v{vbV+4*t+r}, v{vCsV}")
        for r in range(4):
            a(f"v_fma_f32 v{vAV+4*t+r}, v{vaV+4*t+r}, v{vAV+4*t+r}, v{vTm+r}")
        a(f"v_cvt_pk_bf16_f32 v{vVb+2*t}, v{vAV+4*t}, v{vAV+4*t+1}")
        a(f"v_cvt_pk_bf16_f32 v{vVb+2*t+1}, v{vAV+4*t+2}, v{vAV+4*t+3}")
    vS0 = [96 + i for i in range(4)]; vS1 = [100 + i for i in range(4)]
    vU = [104 + i for i in range(4)]; vMx = [108 + i for i in range(4)]; vTt = [112 + i for i in range(4)]
    vP = [116 + 4*i for i in range(4)]
    vOa = [132 + 4*i for i in range(4)]
    T = range(1, 5)
    for t in T:
        i = t - 1
        a(f"v_cndmask_b32 v{vS0[i]}, v{vSP+4*t}, v{vSP+4*t+1}, {S(sOdd,2)}")
        a(f"v_cndmask_b32 v{vS1[i]}, v{vSP+4*t+2}, v{vSP+4*t+3}, {S(sOdd,2)}")
        a(f"v_cndmask_b32 v{vU[i]}, v{vSC+4*t}, v{vSC+4*t+1}, {S(sOdd,2)}")
        a(f"v_cndmask_b32 v{vMx[i]}, v{vSC+4*t+2}, v{vSC+4*t+3}, {S(sOdd,2)}")
    a(f"v_add_f32 v{vS0[0]}, s{sBias}, v{vS0[0]}")
    a(f"v_add_f32 v{vS1[0]}, s{sBias}, v{vS1[0]}")
    for i in range(4):
        a(f"v_cndmask_b32 v{vS0[i]}, v{vU[i]}, v{vS0[i]}, {S(sC0,2)}")
        a(f"v_cndmask_b32 v{vS1[i]}, v{vMx[i]}, v{vS1[i]}, {S(sC1,2)}")
    for i in range(4): a(f"v_max_f32 v{vMx[i]}, v{vS0[i]}, v{vS1[i]}")
    xrow_reduce(a, vMx, vTt, "v_max_f32")
    a(f"s_mov_b32 s{sC}, {f2u(0.25 * 1.4426950408889634):#x}")
    for i in range(4): a(f"v_mul_f32 v{vMx[i]}, s{sC}, v{vMx[i]}")
    for i in range(4):
        a(f"v_fma_f32 v{vS0[i]}, v{vS0[i]}, s{sC}, -v{vMx[i]}")
        a(f"v_fma_f32 v{vS1[i]}, v{vS1[i]}, s{sC}, -v{vMx[i]}")
    for i in range(4):
        a(f"v_exp_f32 v{vS0[i]}, v{vS0[i]}")
        a(f"v_exp_f32 v{vS1[i]}, v{vS1[i]}")
    for i in range(4): a(f"v_add_f32 v{vU[i]}, v{vS0[i]}, v{vS1[i]}")
    xrow_reduce(a, vU, vTt)
    for i in range(4): a(f"v_rcp_f32 v{vU[i]}, v{vU[i]}")
    for i in range(4):
        a(f"v_mul_f32 v{vS0[i]}, v{vS0[i]}, v{vU[i]}")
        a(f"v_mul_f32 v{vS1[i]}, v{vS1[i]}, v{vU[i]}")
    for i in range(4): a(f"v_cvt_pk_bf16_f32 v{vTt[i]}, v{vS0[i]}, v{vS1[i]}")
    for i in range(4):
        for k in range(4): a(f"v_perm_b32 v{vP[i]+k}, v{vTt[i]}, v{vTt[i]}, v{vSel+k}")
    for t in T:
        i = t - 1
        a(f"v_mfma_f32_16x16x32_bf16 {V(vOa[i],4)}, {V(vP[i],4)}, {V(vVb+2*(t-1),4)}, 0")
    for i in range(4):
        a(f"v_cvt_pk_bf16_f32 v{vP[i]}, v{vOa[i]}, v{vOa[i]+1}")
        a(f"v_cvt_pk_bf16_f32 v{vP[i]+1}, v{vOa[i]+2}, v{vOa[i]+3}")
        a(f"buffer_store_dwordx2 {V(vP[i],2)}, v{vOo}, {S(sOT)}, 0 offen offset:{32*i}")
    a.label("A_end")
    a("s_endpgm")
    return a, 224, 64, LDS
```

```python
import sys
from asmlib import Asm

NAME = "parallel_sum__sliding_local_dilated__mixer_token_mlp__prompt"
HB_OFF = 0x000000; HB_BLK = 2048 * 96; HB_SIZE = 11 * HB_BLK
OT_OFF = 0x400000; OT_SIZE = 512 * 4096
UT_OFF = 0x800000; UT_SIZE = 1376 * 1024
SRD3 = "0x00020000"

def srd(a, base, plo, phi, size, off=0):
    if off:
        a(f"s_add_u32 s{base}, s{plo}, {off}")
        a(f"s_addc_u32 s{base+1}, s{phi}, 0")
    else:
        a(f"s_mov_b32 s{base}, s{plo}")
        a(f"s_mov_b32 s{base+1}, s{phi}")
    a(f"s_mov_b32 s{base+2}, {size}")
    a(f"s_mov_b32 s{base+3}, {SRD3}")

def S(b, n=4): return f"s[{b}:{b+n-1}]"
def V(b, n=None): return f"v{b}" if n is None else f"v[{b}:{b+n-1}]"

def kernel_c():
    a = Asm()
    NS, PD, STG = 9, 8, 16384
    sX, sWO, sW2, sOT, sUT, sOUT, sB2 = 8, 12, 16, 20, 24, 28, 32
    sW, sS0, sD0, sRd, sWr, sKP, sKQ, sCnt, sM0b, sT, sWd, sWs = 44, 45, 46, 47, 48, 49, 50, 51, 52, 53, 54, 55
    vLane, vT, vT2, vP0, vP1, vQ0, vQ1, vRA, vRB, vA, vB, vXo, vOo, vB2, vT3 = 1, 2, 3, 4, 5, 6, 7, 8, 9, 10, 11, 12, 13, 14, 15
    vXP = 16
    vAcc = 24
    vFA = 40
    vFB = 56
    vO = 72
    a("s_cmp_ge_u32 s2, 256")
    a("s_cbranch_scc1 C_end")
    a("s_load_dwordx2 s[4:5], s[0:1], 0")
    a("s_load_dwordx2 s[6:7], s[0:1], 16")
    a("s_load_dwordx4 s[36:39], s[0:1], 48")
    a("s_load_dwordx2 s[40:41], s[0:1], 64")
    a("s_load_dwordx2 s[42:43], s[0:1], 80")
    a(f"v_and_b32 v{vLane}, 63, v0")
    a(f"v_lshrrev_b32 v{vT}, 6, v0")
    a(f"v_readfirstlane_b32 s{sW}, v{vT}")
    a(f"s_and_b32 s{sT}, s2, 7")
    a(f"s_lshr_b32 s{sCnt}, s2, 3")
    a(f"s_lshr_b32 s{sS0}, s{sCnt}, 3")
    a(f"s_lshl_b32 s{sT}, s{sT}, 2")
    a(f"s_add_u32 s{sS0}, s{sS0}, s{sT}")
    a(f"s_lshl_b32 s{sS0}, s{sS0}, 6")
    a(f"s_and_b32 s{sD0}, s{sCnt}, 7")
    a(f"s_lshl_b32 s{sD0}, s{sD0}, 6")
    a(f"s_and_b32 s{sWd}, s{sW}, 1")
    a(f"s_lshr_b32 s{sWs}, s{sW}, 1")
    a(f"s_lshl_b32 s{sM0b}, s{sW}, 11")
    a(f"v_lshrrev_b32 v{vT}, 3, v{vLane}")
    a(f"s_lshl_b32 s{sT}, s{sW}, 4")
    a(f"v_add_u32 v{vT}, s{sT}, v{vT}")
    a(f"v_lshrrev_b32 v{vT2}, 4, v{vLane}")
    a(f"v_and_b32 v{vT2}, 1, v{vT2}")
    a(f"v_lshlrev_b32 v{vT2}, 2, v{vT2}")
    a(f"v_and_b32 v{vT3}, 7, v{vLane}")
    a(f"v_xor_b32 v{vT2}, v{vT2}, v{vT3}")
    a(f"v_lshlrev_b32 v{vT2}, 4, v{vT2}")
    a(f"s_lshl_b32 s{sT}, s{sD0}, 1")
    a(f"v_lshl_add_u32 v{vP0}, v{vT}, 10, v{vT2}")
    a(f"v_add_u32 v{vP0}, s{sT}, v{vP0}")
    a(f"v_add_u32 v{vP1}, 8192, v{vP0}")
    a(f"s_lshl_b32 s{sT}, s{sS0}, 1")
    a(f"v_lshl_add_u32 v{vQ0}, v{vT}, 12, v{vT2}")
    a(f"v_add_u32 v{vQ0}, s{sT}, v{vQ0}")
    a(f"v_add_u32 v{vQ1}, 32768, v{vQ0}")
    a(f"v_lshrrev_b32 v{vT}, 5, v{vLane}")
    a(f"v_lshlrev_b32 v{vT}, 3, v{vT}")
    a(f"v_bfe_u32 v{vT2}, v{vLane}, 2, 2")
    a(f"v_add_u32 v{vT}, v{vT}, v{vT2}")
    a(f"v_lshlrev_b32 v{vRA}, 7, v{vT}")
    a(f"v_bfe_u32 v{vT}, v{vLane}, 4, 1")
    a(f"v_lshlrev_b32 v{vT}, 1, v{vT}")
    a(f"v_bfe_u32 v{vT3}, v{vLane}, 1, 1")
    a(f"v_add_u32 v{vT}, v{vT}, v{vT3}")
    a(f"v_lshrrev_b32 v{vT2}, 1, v{vT2}")
    a(f"v_lshlrev_b32 v{vT2}, 2, v{vT2}")
    a(f"v_xor_b32 v{vT}, v{vT}, v{vT2}")
    a(f"v_and_b32 v{vT3}, 1, v{vLane}")
    a(f"v_lshlrev_b32 v{vT3}, 3, v{vT3}")
    a(f"v_add_u32 v{vRA}, v{vRA}, v{vT3}")
    a(f"s_lshl_b32 s{sT}, s{sWd}, 2")
    a(f"v_xor_b32 v{vT2}, s{sT}, v{vT}")
    a(f"v_lshl_add_u32 v{vT3}, v{vT2}, 4, v{vRA}")
    a(f"s_lshl_b32 s{sT}, s{sWs}, 2")
    a(f"v_xor_b32 v{vT2}, s{sT}, v{vT}")
    a(f"v_lshl_add_u32 v{vRB}, v{vT2}, 4, v{vRA}")
    a(f"v_add_u32 v{vRB}, 8192, v{vRB}")
    a(f"v_mov_b32 v{vRA}, v{vT3}")
    a(f"v_and_b32 v{vT}, 31, v{vLane}")
    a(f"s_lshl_b32 s{sT}, s{sWs}, 5")
    a(f"s_add_u32 s{sT}, s{sT}, s{sS0}")
    a(f"v_add_u32 v{vT}, s{sT}, v{vT}")
    a(f"v_lshlrev_b32 v{vB2}, 1, v{vT}")
    a(f"v_lshlrev_b32 v{vT}, 10, v{vT}")
    a(f"s_lshl_b32 s{sT}, s{sWd}, 5")
    a(f"s_add_u32 s{sT}, s{sT}, s{sD0}")
    a(f"s_lshl_b32 s{sT}, s{sT}, 1")
    a(f"v_add_u32 v{vT}, s{sT}, v{vT}")
    a(f"v_lshrrev_b32 v{vT2}, 5, v{vLane}")
    a(f"v_lshl_add_u32 v{vXo}, v{vT2}, 3, v{vT}")
    a(f"v_lshl_add_u32 v{vOo}, v{vT2}, 4, v{vT}")
    for i in range(16): a(f"v_mov_b32 v{vAcc+i}, 0")
    a("s_waitcnt lgkmcnt(0)")
    srd(a, sX, 4, 5, 2097152)
    srd(a, sWO, 6, 7, 524288)
    srd(a, sW2, 36, 37, 1376 * 4096)
    srd(a, sB2, 38, 39, 4096)
    srd(a, sOUT, 40, 41, 2097152)
    srd(a, sOT, 42, 43, OT_SIZE, OT_OFF)
    srd(a, sUT, 42, 43, UT_SIZE, UT_OFF)
    for q in range(4):
        a(f"buffer_load_dwordx2 {V(vXP+2*q,2)}, v{vXo}, {S(sX)}, 0 offen offset:{16*q}")
    a(f"buffer_load_ushort v{vB2}, v{vB2}, {S(sB2)}, 0 offen")
    def dma(sp, sq, slot_sgpr=None, slot_imm=0):
        for (vo, sr, sk, lo) in ((vP0, sp, sKP, 0), (vP1, sp, sKP, 1024), (vQ0, sq, sKQ, 8192), (vQ1, sq, sKQ, 9216)):
            if slot_sgpr is None:
                a(f"s_add_u32 m0, s{sM0b}, {slot_imm + lo}")
            else:
                a(f"s_add_u32 m0, s{slot_sgpr}, {lo}")
            a(f"buffer_load_dwordx4 v{vo}, {S(sr)}, s{sk} offen lds")
    for ps in range(PD):
        a(f"s_mov_b32 s{sKP}, {ps * 65536}")
        a(f"s_mov_b32 s{sKQ}, {ps * 262144}")
        dma(sWO, sOT, None, ps * STG)
    a(f"s_mov_b32 s{sKP}, 0")
    a(f"s_mov_b32 s{sKQ}, 0")
    a(f"s_mov_b32 s{sRd}, 0")
    a(f"s_add_u32 s{sWr}, s{sM0b}, {8 * STG}")
    a(f"s_mov_b32 s{sCnt}, 0")
    a.label("C_loop")
    a(f"s_waitcnt vmcnt({4*(PD-1)})")
    a("s_barrier")
    a(f"v_add_u32 v{vA}, s{sRd}, v{vRA}")
    a(f"v_add_u32 v{vB}, s{sRd}, v{vRB}")
    def reads(kk):
        a(f"ds_read_b64_tr_b16 {V(vFA+4*kk,2)}, v{vA} offset:{kk*2048}")
        a(f"ds_read_b64_tr_b16 {V(vFA+4*kk+2,2)}, v{vA} offset:{kk*2048+512}")
        a(f"ds_read_b64_tr_b16 {V(vFB+4*kk,2)}, v{vB} offset:{kk*2048}")
        a(f"ds_read_b64_tr_b16 {V(vFB+4*kk+2,2)}, v{vB} offset:{kk*2048+512}")
    def mfma(kk):
        a(f"v_mfma_f32_32x32x16_bf16 {V(vAcc,16)}, {V(vFA+4*kk,4)}, {V(vFB+4*kk,4)}, {V(vAcc,16)}")
    reads(0); reads(1); reads(2)
    a("s_waitcnt lgkmcnt(8)"); mfma(0)
    reads(3)
    a("s_waitcnt lgkmcnt(8)"); mfma(1)
    a("s_waitcnt lgkmcnt(4)"); mfma(2)
    a("s_waitcnt lgkmcnt(0)"); mfma(3)
    dma(sUT, sW2, sWr)
    a(f"s_add_u32 s{sKP}, s{sKP}, 65536")
    a(f"s_add_u32 s{sKQ}, s{sKQ}, 262144")
    a(f"s_add_u32 s{sRd}, s{sRd}, {STG}")
    a(f"s_cmp_eq_u32 s{sRd}, {NS*STG}")
    a(f"s_cselect_b32 s{sRd}, 0, s{sRd}")
    a(f"s_add_u32 s{sWr}, s{sWr}, {STG}")
    a(f"s_add_u32 s{sT}, s{sM0b}, {NS*STG}")
    a(f"s_cmp_eq_u32 s{sWr}, s{sT}")
    a(f"s_cselect_b32 s{sWr}, s{sM0b}, s{sWr}")
    a(f"s_add_u32 s{sCnt}, s{sCnt}, 1")
    a(f"s_cmp_lt_u32 s{sCnt}, 30")
    a("s_cbranch_scc1 C_loop")
    a(f"v_lshlrev_b32 v{vB2}, 16, v{vB2}")
    for q in range(4):
        for h in range(2):
            x = vXP + 2*q + h
            a(f"v_lshlrev_b32 v{vT}, 16, v{x}")
            a(f"v_and_b32 v{vT2}, 0xffff0000, v{x}")
            a(f"v_add_f32 v{vT}, v{vT}, v{vB2}")
            a(f"v_add_f32 v{vT2}, v{vT2}, v{vB2}")
            a(f"v_add_f32 v{vT}, v{vT}, v{vAcc+4*q+2*h}")
            a(f"v_add_f32 v{vT2}, v{vT2}, v{vAcc+4*q+2*h+1}")
            a(f"v_cvt_pk_bf16_f32 v{vO+2*q+h}, v{vT}, v{vT2}")
    for p in range(2):
        a(f"v_permlane32_swap_b32 v{vO+4*p}, v{vO+4*p+2}")
        a(f"v_permlane32_swap_b32 v{vO+4*p+1}, v{vO+4*p+3}")
    for p in range(2):
        a(f"buffer_store_dwordx4 {V(vO+4*p,4)}, v{vOo}, {S(sOUT)}, 0 offen offset:{32*p}")
    a.label("C_end")
    a("s_endpgm")
    return a, 80, 64, NS * STG

def kernel_b():
    a = Asm()
    NS, PD, STG = 5, 4, 28672
    sHB, sW1, sUT, sB1 = 8, 12, 16, 20
    sW, sF0, sDb, sRd, sWr, sKH, sKW, sCnt, sT, sT2, sMH, sMW, sC1, sC2 = 36, 37, 38, 39, 40, 41, 42, 43, 44, 45, 46, 47, 48, 49
    vLane, vT, vT2, vT3, vH0, vW0, vRH, vRW, vA, vB, vOo, vB1 = 1, 2, 3, 4, 5, 8, 12, 13, 14, 15, 16, 17
    vAcc = 20
    vFH = 32
    vFW = 80
    vO = 96
    a("s_load_dwordx2 s[4:5], s[0:1], 32")
    a("s_load_dwordx2 s[6:7], s[0:1], 40")
    a("s_load_dwordx2 s[24:25], s[0:1], 80")
    a(f"s_and_b32 s{sT}, s2, 7")
    a(f"s_lshr_b32 s{sCnt}, s2, 3")
    a(f"s_cmp_lt_u32 s{sT}, 2")
    a(f"s_cselect_b32 s{sT2}, 31, 30")
    a(f"s_cmp_ge_u32 s{sCnt}, s{sT2}")
    a("s_cbranch_scc1 B_end")
    a(f"s_min_u32 s{sT2}, s{sT}, 2")
    a(f"s_mul_i32 s{sT}, s{sT}, 30")
    a(f"s_add_u32 s{sT}, s{sT}, s{sT2}")
    a(f"s_add_u32 s{sT}, s{sT}, s{sCnt}")
    a(f"s_mul_i32 s{sF0}, s{sT}, 5958")
    a(f"s_lshr_b32 s{sF0}, s{sF0}, 16")
    a(f"s_mul_i32 s{sT2}, s{sF0}, 11")
    a(f"s_sub_u32 s{sDb}, s{sT}, s{sT2}")
    a(f"s_lshl_b32 s{sF0}, s{sF0}, 6")
    a(f"v_and_b32 v{vLane}, 63, v0")
    a(f"v_lshrrev_b32 v{vT}, 6, v0")
    a(f"v_readfirstlane_b32 s{sW}, v{vT}")
    a(f"v_lshlrev_b32 v{vH0}, 4, v{vLane}")
    a(f"s_mul_i32 s{sMH}, s{sW}, 3072")
    a(f"s_mul_i32 s{sT}, s{sDb}, {HB_BLK}")
    a(f"s_add_u32 s{sT}, s{sT}, s{sMH}")
    a(f"v_add_u32 v{vH0}, s{sT}, v{vH0}")
    a(f"v_add_u32 v{vH0+1}, 1024, v{vH0}")
    a(f"v_add_u32 v{vH0+2}, 2048, v{vH0}")
    a(f"v_lshrrev_b32 v{vT}, 3, v{vLane}")
    a(f"s_lshl_b32 s{sT}, s{sW}, 5")
    a(f"v_add_u32 v{vT}, s{sT}, v{vT}")
    a(f"s_movk_i32 s{sT}, 2752")
    a(f"v_mul_lo_u32 v{vT}, v{vT}, s{sT}")
    a(f"v_lshrrev_b32 v{vT2}, 4, v{vLane}")
    a(f"v_lshlrev_b32 v{vT2}, 1, v{vT2}")
    a(f"v_and_b32 v{vT3}, 7, v{vLane}")
    a(f"v_xor_b32 v{vT2}, v{vT2}, v{vT3}")
    a(f"v_lshl_add_u32 v{vT}, v{vT2}, 4, v{vT}")
    a(f"s_lshl_b32 s{sT}, s{sF0}, 1")
    a(f"v_add_u32 v{vW0}, s{sT}, v{vT}")
    for j in range(1, 4): a(f"v_add_u32 v{vW0+j}, {j*8*2752}, v{vW0}")
    a(f"s_lshl_b32 s{sMW}, s{sW}, 12")
    a(f"s_add_u32 s{sMW}, s{sMW}, 12288")
    a(f"v_lshrrev_b32 v{vT}, 2, v{vLane}")
    a(f"v_mul_u32_u24 v{vRH}, 96, v{vT}")
    a(f"v_and_b32 v{vT2}, 3, v{vLane}")
    a(f"v_lshl_add_u32 v{vRH}, v{vT2}, 3, v{vRH}")
    a(f"v_lshlrev_b32 v{vRW}, 7, v{vT}")
    a(f"v_bfe_u32 v{vT3}, v{vT}, 1, 2")
    a(f"v_lshlrev_b32 v{vT3}, 1, v{vT3}")
    a(f"v_lshrrev_b32 v{vT}, 1, v{vT2}")
    a(f"s_lshl_b32 s{sT}, s{sW}, 1")
    a(f"v_add_u32 v{vT}, s{sT}, v{vT}")
    a(f"v_xor_b32 v{vT}, v{vT}, v{vT3}")
    a(f"v_lshl_add_u32 v{vRW}, v{vT}, 4, v{vRW}")
    a(f"v_and_b32 v{vT2}, 1, v{vT2}")
    a(f"v_lshl_add_u32 v{vRW}, v{vT2}, 3, v{vRW}")
    a(f"v_add_u32 v{vRW}, 12288, v{vRW}")
    a(f"v_and_b32 v{vT}, 15, v{vLane}")
    a(f"s_lshl_b32 s{sT}, s{sW}, 4")
    a(f"s_add_u32 s{sT}, s{sT}, s{sF0}")
    a(f"v_add_u32 v{vT}, s{sT}, v{vT}")
    a(f"v_lshlrev_b32 v{vB1}, 1, v{vT}")
    a(f"v_lshlrev_b32 v{vOo}, 10, v{vT}")
    a(f"v_lshrrev_b32 v{vT2}, 4, v{vLane}")
    a(f"v_lshl_add_u32 v{vOo}, v{vT2}, 3, v{vOo}")
    a(f"s_mul_i32 s{sT}, s{sDb}, 96")
    a(f"v_add_u32 v{vOo}, s{sT}, v{vOo}")
    for i in range(12): a(f"v_mov_b32 v{vAcc+i}, 0")
    a("s_waitcnt lgkmcnt(0)")
    srd(a, sW1, 4, 5, 2048 * 2752)
    srd(a, sB1, 6, 7, 2752)
    srd(a, sHB, 24, 25, HB_SIZE, HB_OFF)
    srd(a, sUT, 24, 25, UT_SIZE, UT_OFF)
    a(f"buffer_load_ushort v{vB1}, v{vB1}, {S(sB1)}, 0 offen")
    def dma(slot_sgpr=None, slot_imm=0):
        for jj in range(3):
            if slot_sgpr is None: a(f"s_add_u32 m0, s{sMH}, {slot_imm + jj*1024}")
            else:
                a(f"s_add_u32 m0, s{slot_sgpr}, s{sMH}")
                if jj: a(f"s_add_u32 m0, m0, {jj*1024}")
            a(f"buffer_load_dwordx4 v{vH0+jj}, {S(sHB)}, s{sKH} offen lds")
        for j in range(4):
            if slot_sgpr is None: a(f"s_add_u32 m0, s{sMW}, {slot_imm + j*1024}")
            else:
                a(f"s_add_u32 m0, s{slot_sgpr}, s{sMW}")
                if j: a(f"s_add_u32 m0, m0, {j*1024}")
            a(f"buffer_load_dwordx4 v{vW0+j}, {S(sW1)}, s{sKW} offen lds")
    for ps in range(PD):
        a(f"s_mov_b32 s{sKH}, {ps * 128 * 96}")
        a(f"s_mov_b32 s{sKW}, {ps * 128 * 2752}")
        dma(None, ps * STG)
    a(f"s_mov_b32 s{sKH}, {PD * 128 * 96}")
    a(f"s_mov_b32 s{sKW}, {PD * 128 * 2752}")
    a(f"s_mov_b32 s{sRd}, 0")
    a(f"s_mov_b32 s{sWr}, {PD * STG}")
    a(f"s_mov_b32 s{sCnt}, 0")
    a.label("B_loop")
    a(f"s_waitcnt vmcnt({7*(PD-1)})")
    a("s_barrier")
    a(f"v_add_u32 v{vA}, s{sRd}, v{vRH}")
    a(f"v_add_u32 v{vB}, s{sRd}, v{vRW}")
    def reads(kk):
        a(f"ds_read_b64_tr_b16 {V(vFW+4*kk,2)}, v{vB} offset:{kk*4096}")
        a(f"ds_read_b64_tr_b16 {V(vFW+4*kk+2,2)}, v{vB} offset:{kk*4096+2048}")
        for t in range(3):
            a(f"ds_read_b64_tr_b16 {V(vFH+12*kk+4*t,2)}, v{vA} offset:{kk*3072+32*t}")
            a(f"ds_read_b64_tr_b16 {V(vFH+12*kk+4*t+2,2)}, v{vA} offset:{kk*3072+32*t+1536}")
    def mfma(kk):
        for t in range(3):
            a(f"v_mfma_f32_16x16x32_bf16 {V(vAcc+4*t,4)}, {V(vFH+12*kk+4*t,4)}, {V(vFW+4*kk,4)}, {V(vAcc+4*t,4)}")
    reads(0)
    reads(1)
    a("s_waitcnt lgkmcnt(8)"); mfma(0)
    reads(2)
    a("s_waitcnt lgkmcnt(8)"); mfma(1)
    reads(3)
    a("s_waitcnt lgkmcnt(8)"); mfma(2)
    a("s_waitcnt lgkmcnt(0)"); mfma(3)
    dma(sWr)
    a(f"s_add_u32 s{sKH}, s{sKH}, {128*96}")
    a(f"s_add_u32 s{sKW}, s{sKW}, {128*2752}")
    a(f"s_add_u32 s{sCnt}, s{sCnt}, 1")
    a(f"s_cmp_ge_u32 s{sCnt}, {16-PD}")
    a(f"s_cselect_b32 s{sKH}, 0x10000000, s{sKH}")
    a(f"s_add_u32 s{sRd}, s{sRd}, {STG}")
    a(f"s_cmp_eq_u32 s{sRd}, {NS*STG}")
    a(f"s_cselect_b32 s{sRd}, 0, s{sRd}")
    a(f"s_add_u32 s{sWr}, s{sWr}, {STG}")
    a(f"s_cmp_eq_u32 s{sWr}, {NS*STG}")
    a(f"s_cselect_b32 s{sWr}, 0, s{sWr}")
    a(f"s_cmp_lt_u32 s{sCnt}, 16")
    a("s_cbranch_scc1 B_loop")
    a(f"v_lshlrev_b32 v{vB1}, 16, v{vB1}")
    a(f"s_mov_b32 s{sC1}, 0xc0135761")
    a(f"s_mov_b32 s{sC2}, 0xbdd2d3e8")
    import struct
    def f2u(x): return struct.unpack("<I", struct.pack("<f", x))[0]
    c1 = -2.0 * 1.4426950408889634 * 0.7978845608028654
    c2 = c1 * 0.044715
    a.lines[-2] = type(a.lines[-2])(f"s_mov_b32 s{sC1}, {f2u(c1):#x}")
    a.lines[-1] = type(a.lines[-1])(f"s_mov_b32 s{sC2}, {f2u(c2):#x}")
    a(f"v_mov_b32 v{vT3}, s{sC1}")
    for t in range(3):
        for r in range(4):
            x = vAcc + 4*t + r
            a(f"v_add_f32 v{x}, v{x}, v{vB1}")
        for r in range(4):
            x = vAcc + 4*t + r; tmp = vFH + r
            a(f"v_mul_f32 v{tmp}, v{x}, v{x}")
            a(f"v_fma_f32 v{tmp}, v{tmp}, s{sC2}, v{vT3}")
            a(f"v_mul_f32 v{tmp}, v{tmp}, v{x}")
            a(f"v_exp_f32 v{tmp}, v{tmp}")
        for r in range(4):
            tmp = vFH + r
            a(f"v_add_f32 v{tmp}, 1.0, v{tmp}")
            a(f"v_rcp_f32 v{tmp}, v{tmp}")
        for r in range(4):
            x = vAcc + 4*t + r; tmp = vFH + r
            a(f"v_mul_f32 v{x}, v{x}, v{tmp}")
        a(f"v_cvt_pk_bf16_f32 v{vO+2*t}, v{vAcc+4*t}, v{vAcc+4*t+1}")
        a(f"v_cvt_pk_bf16_f32 v{vO+2*t+1}, v{vAcc+4*t+2}, v{vAcc+4*t+3}")
    a(f"buffer_store_dwordx2 {V(vO,2)}, v{vOo}, {S(sUT)}, 0 offen")
    a(f"buffer_store_dwordx2 {V(vO+2,2)}, v{vOo}, {S(sUT)}, 0 offen offset:32")
    a(f"s_cmp_eq_u32 s{sDb}, 10")
    a("s_cbranch_scc1 B_end")
    a(f"buffer_store_dwordx2 {V(vO+4,2)}, v{vOo}, {S(sUT)}, 0 offen offset:64")
    a.label("B_end")
    a("s_endpgm")
    return a, 104, 64, NS * STG

from gen_a import kernel_a

def emit(out):
    ks = [("ka_kernel", kernel_a, 256), ("kb_kernel", kernel_b, 248), ("kc_kernel", kernel_c, 256)]
    hdr = open("cdna_kernels/" + NAME + ".s.ref").read().split("; Override")[0]
    txt = hdr
    built = []
    for name, fn, grid in ks:
        a, nv, ns, lds = fn()
        body = a.finish()
        built.append((name, body, nv, ns))
        txt += f"; @launch kernel={name} grid=({grid},1,1) block=(256,1,1) lds={lds}\n"
        print(name, "instrs", len(a.lines), "nops", a.count_nops(), "lds", lds, file=sys.stderr)
    txt += '.amdgcn_target "amdgcn-amd-amdhsa--gfx950"\n.text\n'
    for name, body, nv, ns in built:
        txt += f".globl {name}\n.p2align 8\n.type {name},@function\n{name}:\n{body}"
    txt += '.section .rodata,"a"\n'
    for name, body, nv, ns in built:
        acc = (nv + 3) // 4 * 4
        txt += f""".p2align 6
.amdhsa_kernel {name}
  .amdhsa_next_free_vgpr {nv}
  .amdhsa_next_free_sgpr {ns}
  .amdhsa_accum_offset {acc}
  .amdhsa_group_segment_fixed_size 0
  .amdhsa_kernarg_size 88
  .amdhsa_user_sgpr_count 2
  .amdhsa_user_sgpr_kernarg_segment_ptr 1
  .amdhsa_system_sgpr_workgroup_id_x 1
  .amdhsa_float_denorm_mode_32 3
.end_amdhsa_kernel
"""
    open(out, "w").write(txt)

if __name__ == "__main__":
    emit(sys.argv[1] if len(sys.argv) > 1 else "cdna_kernels/" + NAME + ".s")
```

```python
import re

TRANS = ("v_exp_f32", "v_log_f32", "v_rcp_f32", "v_rsq_f32", "v_sqrt_f32", "v_sin_f32", "v_cos_f32")
MFMA_PASSES = {
    "v_mfma_f32_32x32x16_bf16": 8, "v_mfma_f32_16x16x32_bf16": 4, "v_mfma_f32_16x16x16_bf16": 4,
    "v_mfma_f32_32x32x8_bf16": 8,
}
RAW_VALU = {2: 5, 4: 8, 8: 12, 16: 20}
OVL_C = {2: 4, 4: 6, 8: 10, 16: 18}
WAR_C = {2: 1, 4: 3, 8: 7, 16: 15}

def expand(op):
    op = op.strip()
    m = re.fullmatch(r"(-|abs\()?([vsa])\[(\d+):(\d+)\]\)?", op)
    if m: return [m.group(2) + str(i) for i in range(int(m.group(3)), int(m.group(4)) + 1)]
    m = re.fullmatch(r"(-|abs\(|-abs\()?([vsa])(\d+)\)?", op)
    if m: return [m.group(2) + m.group(3)]
    if op in ("vcc", "vcc_lo", "vcc_hi"): return ["vcc"]
    if op in ("m0", "exec", "scc"): return [op]
    return []

class Ins:
    __slots__ = ("text", "op", "ops", "mods", "kind", "reads", "writes", "nops", "label", "target")
    def __init__(self, text):
        self.text = text; self.nops = 0; self.label = None; self.target = None
        t = text.split(";")[0].strip()
        self.reads = []; self.writes = []; self.kind = "other"; self.mods = ""
        if t.endswith(":"):
            self.kind = "label"; self.label = t[:-1]; self.op = ""; self.ops = []; return
        if not t or t.startswith("."):
            self.kind = "directive"; self.op = ""; self.ops = []; return
        parts = t.split(None, 1)
        self.op = parts[0]
        rest = parts[1] if len(parts) > 1 else ""
        ops = []; cur = ""; depth = 0
        for ch in rest:
            if ch in "[(": depth += 1
            if ch in "])": depth -= 1
            if ch == "," and depth == 0: ops.append(cur.strip()); cur = ""
            else: cur += ch
        if cur.strip(): ops.append(cur.strip())
        if ops:
            sp = ops[-1].split()
            if len(sp) > 1:
                ops[-1] = sp[0]; self.mods = " ".join(sp[1:])
        self.ops = ops
        self.classify()
    def classify(self):
        op, ops = self.op, self.ops
        E = expand
        if op.startswith("v_mfma"):
            self.kind = "mfma"; self.writes = E(ops[0]); self.reads = E(ops[1]) + E(ops[2]) + E(ops[3])
        elif op.startswith("v_cmp"):
            self.kind = "valu"; self.writes = E(ops[0]); self.reads = sum((E(o) for o in ops[1:]), [])
        elif op.startswith("v_permlane") and "swap" in op:
            self.kind = "valu"; self.writes = E(ops[0]) + E(ops[1]); self.reads = list(self.writes)
        elif op.startswith("v_"):
            self.kind = "valu"; self.writes = E(ops[0]); self.reads = sum((E(o) for o in ops[1:]), [])
            if op.startswith(("v_fmac", "v_dot2c", "v_pk_fmac", "v_writelane")): self.reads += self.writes
            if op.startswith(("v_add_co", "v_sub_co", "v_addc_co", "v_subb_co")):
                self.writes = E(ops[0]) + E(ops[1]); self.reads = sum((E(o) for o in ops[2:]), [])
            if "dpp" in op or "row_" in self.mods or "quad_perm" in self.mods: self.reads += self.writes
            if op.startswith("v_cndmask") and len(ops) == 3: self.reads.append("vcc")
        elif op.startswith("buffer_load") or op.startswith("global_load"):
            self.kind = "vmem"
            if "lds" in self.mods.split() or "_lds_" in op:
                self.reads = sum((E(o) for o in ops), []) + ["m0"]; self.writes = []
            else:
                self.writes = E(ops[0]); self.reads = sum((E(o) for o in ops[1:]), [])
        elif op.startswith(("buffer_store", "global_store", "buffer_atomic", "global_atomic")):
            self.kind = "vmem"; self.reads = sum((E(o) for o in ops), [])
        elif op.startswith(("buffer_inv", "buffer_wbl2")):
            self.kind = "vmem"
        elif op.startswith("ds_read") or op.startswith("ds_bpermute") or op.startswith("ds_swizzle"):
            self.kind = "ds"; self.writes = E(ops[0]); self.reads = sum((E(o) for o in ops[1:]), [])
        elif op.startswith("ds_write"):
            self.kind = "ds"; self.reads = sum((E(o) for o in ops), [])
        elif op.startswith(("s_cbranch", "s_branch")):
            self.kind = "branch"; self.target = ops[0]
        elif op == "s_nop":
            self.kind = "nop"
        elif op.startswith("s_"):
            self.kind = "salu"
            if op.startswith(("s_cmp", "s_waitcnt", "s_barrier", "s_endpgm", "s_setprio", "s_sleep", "s_bitcmp")):
                self.reads = sum((E(o) for o in ops), [])
            else:
                self.writes = E(ops[0]) if ops else []; self.reads = sum((E(o) for o in ops[1:]), [])
        else:
            raise ValueError("unknown instruction: " + self.text)

class State:
    def __init__(self): self.d = {}
    def copy(self):
        s = State(); s.d = dict(self.d); return s
    def tick(self, n):
        for k in list(self.d):
            v = self.d[k] + n
            if v > 24: del self.d[k]
            else: self.d[k] = v
    def merge(self, o):
        for k, v in o.d.items():
            if k not in self.d or v < self.d[k]: self.d[k] = v
    def age(self, key): return self.d.get(key, 1000)

def need(ins, st):
    n = 0
    def req(key, w):
        nonlocal n
        a = st.age(key)
        if a < w: n = max(n, w - a)
    k = ins.kind
    if k == "mfma":
        D = ins.writes; A = expand(ins.ops[1]); B = expand(ins.ops[2]); C = expand(ins.ops[3])
        p = MFMA_PASSES[ins.op]
        for r in A + B + C: req(("valu_w", r), 2)
        for key in list(st.d):
            if key[0] == "mfma_w":
                _, r, pp, rng, opn = key
                if r in A or r in B: req(key, RAW_VALU[pp])
                if r in C or r in D:
                    same = (tuple(C) == rng and tuple(D) == rng and opn == ins.op) if C else False
                    if not same: req(key, OVL_C[pp])
    elif k == "valu":
        isdpp = "dpp" in ins.op or "row_" in ins.mods or "quad_perm" in ins.mods
        isperm = ins.op.startswith("v_permlane")
        isrl = ins.op.startswith(("v_readlane", "v_readfirstlane"))
        for key in list(st.d):
            if key[0] == "mfma_w":
                if key[1] in ins.reads or key[1] in ins.writes: req(key, RAW_VALU[key[2]])
            elif key[0] == "mfma_c":
                if key[1] in ins.writes: req(key, WAR_C[key[2]])
        for r in ins.reads:
            if r[0] == "v" and r != "vcc":
                req(("trans_w", r), 1)
                if isdpp or isperm: req(("valu_w", r), 2)
                if isrl: req(("valu_w", r), 1)
            elif r[0] == "s" or r == "vcc":
                req(("valu_sgpr_w", r), 4 if ins.op.startswith(("v_readlane", "v_writelane")) else 2)
        for r in ins.writes: req(("store_data", r), 2)
    elif k in ("vmem", "ds"):
        for key in list(st.d):
            if key[0] == "mfma_w":
                if key[1] in ins.reads or key[1] in ins.writes: req(key, RAW_VALU[key[2]])
        for r in ins.reads:
            if r[0] == "s" or r == "vcc": req(("valu_sgpr_w", r), 5)
            if r == "m0": req(("salu_m0",), 1)
        for r in ins.writes: req(("store_data", r), 2)
    elif k == "salu" or k == "branch":
        for r in ins.reads:
            if r[0] == "s" or r == "vcc": req(("valu_sgpr_w", r), 1)
    return n

def apply(ins, st):
    k = ins.kind
    if k in ("label", "directive"): return
    if k == "nop":
        st.tick(int(ins.ops[0], 0) + 1); return
    st.tick(1)
    if k == "mfma":
        p = MFMA_PASSES[ins.op]; rng = tuple(ins.writes)
        for key in [key for key in st.d if key[0] == "mfma_w" and key[1] in ins.writes]: del st.d[key]
        for r in ins.writes: st.d[("mfma_w", r, p, rng, ins.op)] = 0
        for r in expand(ins.ops[3]): st.d[("mfma_c", r, p)] = 0
    elif k == "valu":
        for r in ins.writes:
            if r[0] == "v" and r != "vcc":
                st.d[("valu_w", r)] = 0
                if ins.op.replace("_e32", "").replace("_e64", "") in TRANS: st.d[("trans_w", r)] = 0
                else: st.d.pop(("trans_w", r), None)
                for key in [key for key in st.d if key[0] == "mfma_w" and key[1] == r]: del st.d[key]
            else:
                st.d[("valu_sgpr_w", r)] = 0
    elif k == "salu":
        if "m0" in ins.writes: st.d[("salu_m0",)] = 0
        for r in ins.writes: st.d.pop(("valu_sgpr_w", r), None)
    elif k == "vmem":
        if ins.op.endswith(("x4", "x3")) and "store" in ins.op:
            for r in expand(ins.ops[0] if ins.op.startswith("buffer") else ins.ops[1]): st.d[("store_data", r)] = 0
        for r in ins.writes:
            st.d.pop(("valu_w", r), None)
    elif k == "ds":
        for r in ins.writes: st.d.pop(("valu_w", r), None)

def hazard_pass(inss):
    labels = {i.label: n for n, i in enumerate(inss) if i.kind == "label"}
    changed = True; rounds = 0
    while changed:
        changed = False; rounds += 1
        assert rounds < 20
        entry = {}
        for it in range(3):
            st = State()
            for n, ins in enumerate(inss):
                if ins.kind == "label":
                    if ins.label in entry: st.merge(entry[ins.label])
                    continue
                if ins.kind == "directive": continue
                st.tick(ins.nops)
                w = need(ins, st)
                if w > 0:
                    ins.nops += w; st.tick(w); changed = True
                apply(ins, st)
                if ins.kind == "branch":
                    e = entry.setdefault(ins.target, State()); e.merge(st)
                    if ins.op == "s_branch": st = State()
                if ins.op == "s_endpgm": st = State()
    return inss

class Asm:
    def __init__(self): self.lines = []
    def __call__(self, text):
        for l in text.strip("\n").split("\n"):
            l = l.strip()
            if not l or l.startswith(";"): continue
            self.lines.append(Ins(l))
    def label(self, name): self.lines.append(Ins(name + ":"))
    stamps = False
    def stamp_init(self, vreg, spair):
        self.sv = vreg; self.sp = spair; self.sn = 0
        if self.stamps: self(f"v_mov_b32 v{vreg}, 0")
    def stamp(self, lane=None):
        if not self.stamps: return
        self(f"s_memtime s[{self.sp}:{self.sp+1}]")
        self("s_waitcnt lgkmcnt(0)")
        if lane is None:
            lane = self.sn; self.sn += 1
        if isinstance(lane, str):
            self(f"s_mov_b32 m0, {lane}"); lane = "m0"
        self(f"v_writelane_b32 v{self.sv}, s{self.sp}, {lane}")
    def stamp2(self, lane, reg=249):
        if not self.stamps: return
        self(f"s_memtime s[{self.sp}:{self.sp+1}]")
        self("s_waitcnt lgkmcnt(0)")
        self(f"v_writelane_b32 v{reg}, s{self.sp}, {lane}")
    def stamp_dump(self, kidx, wsptr_lo, tmpv, srd_base, wave_sgpr, tmps):
        if not self.stamps: return
        self(f"s_add_u32 s{srd_base}, s{wsptr_lo}, {0x1000000 + kidx*0x100000}")
        self(f"s_addc_u32 s{srd_base+1}, s{wsptr_lo+1}, 0")
        self(f"s_mov_b32 s{srd_base+2}, 0x100000")
        self(f"s_mov_b32 s{srd_base+3}, 0x00020000")
        self(f"s_lshl_b32 s{tmps}, s2, 3")
        self(f"s_add_u32 s{tmps}, s{tmps}, s{wave_sgpr}")
        self(f"s_lshl_b32 s{tmps}, s{tmps}, 8")
        self(f"v_and_b32 v{tmpv}, 63, v0")
        self(f"v_lshlrev_b32 v{tmpv}, 2, v{tmpv}")
        self(f"v_add_u32 v{tmpv}, s{tmps}, v{tmpv}")
        self(f"buffer_store_dword v{self.sv}, v{tmpv}, s[{srd_base}:{srd_base+3}], 0 offen")
    def finish(self):
        hazard_pass(self.lines)
        out = []
        for i in self.lines:
            n = i.nops
            while n > 0:
                k = min(n, 16); out.append("  s_nop %d" % (k - 1)); n -= k
            out.append(i.text if i.kind == "label" else "  " + i.text)
        return "\n".join(out) + "\n"
    def count_nops(self): return sum(i.nops for i in self.lines)
```

```python
import sys, struct, os
from asmlib import Asm, Ins

NAME = "parallel_sum__sliding_local_dilated__mixer_token_mlp__prompt"
def env(n, d): return int(os.environ.get(n, str(d)))
H_OFF = 0x000000; H_SIZE = 2048 * 1024
OT_OFF = 0x400000; OT_SIZE = 512 * 4096
UT_OFF = 0x800000; UT_SIZE = 1376 * 1024
ST_OFF = 0xC00000; ST_SIZE = 2048 * 8
FL_OFF = 0xC10000; FL_SIZE = 0x4000
FH, FO, FU = 0x1000, 0x2000, 0x3000
SRD3 = "0x00020000"
EPS = 1e-5
LDS_TOTAL = 163840
SCR = LDS_TOTAL - 4 * 16 * 144
RING = SCR
SC = " sc1"
QEARLY = env("QEARLY", 8); PRE = env("PRE", 1); BQE = env("BQE", 4); PFA = env("PFA", 1); ROTA = env("ROTA", 0)
CAP = env("CAP", 2); CAPE = env("CAPE", 1); CHUNK = env("CHUNK", 24); TOUCH = env("TOUCH", 1); CODEPF = env("CODEPF", 0)

def f2u(x): return struct.unpack("<I", struct.pack("<f", x))[0]
def S(b, n=4): return f"s[{b}:{b+n-1}]"
def V(b, n=None): return f"v{b}" if n is None else f"v[{b}:{b+n-1}]"
def srd(a, base, p, size, off=0):
    if off:
        a(f"s_add_u32 s{base}, s{p}, {off}"); a(f"s_addc_u32 s{base+1}, s{p+1}, 0")
    else:
        a(f"s_mov_b32 s{base}, s{p}"); a(f"s_mov_b32 s{base+1}, s{p+1}")
    a(f"s_mov_b32 s{base+2}, {size}"); a(f"s_mov_b32 s{base+3}, {SRD3}")

class VM:
    def __init__(self, a): self.a = a; self.q = []
    def issue(self, tag): self.q.append(tag)
    def count(self, *tags):
        idxs = [i for i, t in enumerate(self.q) if t in tags]
        if not idxs: return None
        idx = max(idxs); n = len(self.q) - 1 - idx; self.q = self.q[idx+1:]
        assert n <= 63
        return n
    def wait(self, *tags):
        n = self.count(*tags)
        if n is not None: self.a(f"s_waitcnt vmcnt({n})")
    def drain(self):
        self.a("s_waitcnt vmcnt(0)"); self.q = []

def xrow_reduce(a, regs, tmps, op="v_add_f32"):
    for sw in ("v_permlane16_swap_b32", "v_permlane32_swap_b32"):
        for r, t in zip(regs, tmps): a(f"v_mov_b32 v{t}, v{r}")
        for r, t in zip(regs, tmps): a(f"{sw} v{r}, v{t}")
        for r, t in zip(regs, tmps): a(f"{op} v{r}, v{r}, v{t}")
def wave_reduce(a, regs, tmps):
    for mod in ("quad_perm:[1,0,3,2]", "quad_perm:[2,3,0,1]", "row_half_mirror", "row_mirror"):
        for r in regs: a(f"v_add_f32_dpp v{r}, v{r}, v{r} {mod} row_mask:0xf bank_mask:0xf")
    xrow_reduce(a, regs, tmps)

pX, pWQ, pWO, pW1, pB1, pW2, pB2, pOUT, pDBG, pWS = 64, 66, 68, 72, 74, 76, 78, 80, 82, 84
sW, sRb, sHg, sDb, sF0, sS0, sD0, sNonce, sT, sT2, sHasB, sWg, sFb = 44, 45, 46, 47, 48, 49, 50, 51, 52, 53, 54, 55, 95
sSb, sS0c, sD0c = 100, 101, 3

NA, NB, NC = 8, 32, 30
intervals = []
for ph, n in (("A", NA), ("B", NB), ("C", NC)):
    intervals.append(((ph, 0), None, None))
    for i in range(n - 1): intervals.append(((ph, i + 1), (ph, i), None))
    intervals.append((None, (ph, n - 1), ph))
kA = [k for k, iv in enumerate(intervals) if iv[2] == "A"][0]
intervals[kA] = (("B", 0), ("A", NA - 1), None)
del intervals[kA + 1]
read_at = {iv[0]: k for k, iv in enumerate(intervals) if iv[0]}
K_AEND = kA
K_EB = [k for k, iv in enumerate(intervals) if iv[2] == "B"][0]
K_POST_H = 2
K_CHK_H = env("KCHKH", 6)
K_CHK_S = K_CHK_H
K_EA0 = K_AEND + 1
K_CHK_O = K_EB - 10
K_POST_U = K_EB + 1
K_CHK_U = K_EB + env("DU", 4)

def unit_size(u): return 34816 if u[0] == "A" else 8192
def unit_read(u): return read_at[(u[0], u[1])]
def unit_min(u):
    ph, i = u[0], u[1]
    if ph == "B" and u[2] == "P": return K_CHK_H + 1
    if ph == "C" and u[2] == "Q" and i < 8: return K_CHK_O + 1
    if ph == "C" and u[2] == "P" and i >= 8: return K_CHK_U + 1
    return -1
streams = {
    "A": [("A", i) for i in range(NA)],
    "BQ": [("B", i, "Q") for i in range(NB)], "BP": [("B", i, "P") for i in range(NB)],
    "CP": [("C", i, "P") for i in range(NC)], "CQ": [("C", i, "Q") for i in range(NC)],
}
def make_schedule():
    off = {}; issue = {k: [] for k in range(-1, len(intervals))}
    alloc = []; pos = {n: 0 for n in streams}
    def fits(u, k):
        sz = unit_size(u)
        busy = sorted((off[p], off[p] + unit_size(p)) for p in alloc if unit_read(p) >= k)
        o = 0
        for (b0, b1) in busy:
            if o + sz <= b0: break
            o = max(o, b1)
        return o if o + sz <= RING else None
    def heads(k):
        h = []
        for n, l in streams.items():
            if pos[n] >= len(l): continue
            u = l[pos[n]]
            if k < unit_min(u): continue
            if n == "BQ" and pos["BQ"] - pos["BP"] >= BQE and k <= K_CHK_H: continue
            if n == "CQ" and u[1] >= 8 and pos["CQ"] - max(pos["CP"], 8) >= QEARLY: continue
            if n[0] == "B" and pos["A"] < NA: continue
            if n[0] == "C" and (pos["BQ"] < NB or pos["BP"] < NB): continue
            h.append((unit_read(u), 0 if n[-1] == "P" else 1, n, u))
        return sorted(h)
    def step(k, cap):
        n = 0
        while True:
            h = heads(k)
            if not h: break
            dl, _, name, u = h[0]
            if u[0] != "A" and n >= cap and dl > k + 3: break
            o = fits(u, k)
            if o is None: break
            off[u] = o; alloc.append(u); issue[k].append(u); pos[name] += 1
            if u[0] != "A": n += 1
            if k == -1 and len(issue[-1]) >= PRE: break
    step(-1, 0)
    for k in range(len(intervals)):
        cap = CAPE if k <= K_CHK_H else (6 if k in (K_CHK_H + 1, K_CHK_H + 2, K_CHK_H + 3, K_EB, K_CHK_U + 1) else (3 if K_EB < k <= K_CHK_U else CAP))
        step(k, cap)
    for n, l in streams.items(): assert pos[n] == len(l), (n, pos[n])
    for k, l in issue.items():
        for u in l: assert k < unit_read(u), (u, k)
    return off, issue

def rt(a, lane):
    if not a.stamps: return
    a("s_memrealtime s[60:61]"); a("s_waitcnt lgkmcnt(0)"); a(f"v_writelane_b32 v248, s60, {lane}")

def kernel():
    a = Asm()
    off, issue = make_schedule()
    print("schedule:", {k: ["".join(map(str, u)) for u in l] for k, l in issue.items() if l}, file=sys.stderr)
    print("K_AEND", K_AEND, "K_EB", K_EB, file=sys.stderr)
    vLane, vT = 1, 2
    a("s_cmp_ge_u32 s2, 256")
    a("s_cbranch_scc1 K_end")
    a.stamp_init(250, 60); a.stamp(0)
    if a.stamps:
        a("v_mov_b32 v249, 0"); a("v_mov_b32 v248, 0"); rt(a, 40)
    a("s_load_dwordx16 s[64:79], s[0:1], 0")
    a("s_load_dwordx4 s[80:83], s[0:1], 64")
    a("s_load_dwordx2 s[84:85], s[0:1], 80")
    a(f"s_mov_b32 s{sWg}, s2")
    a(f"v_and_b32 v{vLane}, 63, v0")
    a(f"v_lshrrev_b32 v{vT}, 6, v0")
    a(f"v_readfirstlane_b32 s{sW}, v{vT}")
    a(f"s_and_b32 s{sT}, s2, 7")
    a(f"s_lshr_b32 s{sT2}, s2, 3")
    a(f"s_lshr_b32 s{sRb}, s{sT}, 1")
    a(f"s_lshl_b32 s{sRb}, s{sRb}, 3")
    a(f"s_lshr_b32 s{sHg}, s{sT2}, 2")
    a(f"s_add_u32 s{sRb}, s{sRb}, s{sHg}")
    a(f"s_and_b32 s{sHg}, s{sT}, 1")
    a(f"s_lshl_b32 s{sHg}, s{sHg}, 2")
    a(f"s_and_b32 s{sDb}, s{sT2}, 3")
    a(f"s_add_u32 s{sHg}, s{sHg}, s{sDb}")
    a(f"s_lshl_b32 s{sS0}, s{sRb}, 6")
    a(f"s_lshl_b32 s{sD0}, s{sHg}, 6")
    a(f"s_lshr_b32 s{sSb}, s{sT2}, 3")
    a(f"s_lshl_b32 s{sFb}, s{sSb}, 3")
    a(f"s_add_u32 s{sFb}, s{sFb}, s{sT}")
    a(f"s_lshl_b32 s{sT}, s{sT}, 2")
    a(f"s_add_u32 s{sSb}, s{sSb}, s{sT}")
    a(f"s_and_b32 s{sDb}, s{sT2}, 7")
    a(f"s_lshl_b32 s{sS0c}, s{sSb}, 6")
    a(f"s_lshl_b32 s{sD0c}, s{sDb}, 6")
    a(f"s_cmp_lt_u32 s{sFb}, 22")
    a(f"s_cselect_b32 s{sHasB}, 1, 0")
    a(f"s_min_u32 s{sF0}, s{sFb}, 21")
    a(f"s_lshl_b32 s{sF0}, s{sF0}, 6")
    a(f"s_cmp_ge_u32 s{sW}, 4")
    a("s_cbranch_scc1 K_prod")
    consumer(a, off)
    a.label("K_prod")
    producer(a, off, issue)
    a.label("K_end")
    a("s_endpgm")
    return a, 256, 102, LDS_TOTAL

class Buf:
    def __init__(self): self.l = []; self.stamps = False
    def __call__(self, t): self.l.append(t)
    def stamp2(self, *x): pass

def consumer(a, off):
    vLane, vT, vT2, vT3 = 1, 2, 3, 4
    sX, sHB, sST, sOT, sUT, sB1, sB2, sOUT, sFLs = 8, 12, 16, 20, 24, 28, 32, 36, 40
    sM0row, sOdd, sC0, sC1, sBias, sC, sC1g, sC2g, sFi = 56, 58, 86, 88, 90, 91, 92, 93, 94
    sPF = 96
    vm = VM(a)
    vH = 160; vHx, vSo = 5, 7
    vPF, vPFd = 6, 240
    a(f"s_lshl_b32 s{sT}, s{sHg}, 3")
    a(f"s_add_u32 s{sT}, s{sT}, s{sS0}")
    a(f"s_lshl_b32 s{sT2}, s{sW}, 1")
    a(f"s_add_u32 s{sT}, s{sT}, s{sT2}")
    a(f"s_lshl_b32 s{sT2}, s{sT}, 10")
    a(f"v_lshlrev_b32 v{vT}, 4, v{vLane}")
    a(f"v_add_u32 v{vHx}, s{sT2}, v{vT}")
    a(f"s_lshl_b32 s{sT2}, s{sT}, 3")
    a(f"v_mov_b32 v{vSo}, s{sT2}")
    if PFA:
        a(f"s_lshr_b32 s{sT2}, s{sWg}, 3")
        a(f"s_cmp_eq_u32 s{sW}, 3")
        a("s_cbranch_scc1 K_pfa_x")
        a(f"v_min_u32 v{vT}, 23, v{vLane}")
        a(f"v_cmp_le_u32 vcc, 12, v{vT}")
        a(f"v_cndmask_b32 v{vT2}, 0, 1, vcc")
        a(f"v_mul_u32_u24 v{vT3}, 12, v{vT2}")
        a(f"v_sub_u32 v{vT}, v{vT}, v{vT3}")
        a(f"s_lshl_b32 s{sT}, s{sT2}, 1")
        a(f"v_add_u32 v{vT2}, s{sT}, v{vT2}")
        a(f"v_mul_u32_u24 v{vPF}, 3072, v{vT2}")
        a(f"v_lshrrev_b32 v{vT2}, 2, v{vT}")
        a(f"v_lshl_add_u32 v{vPF}, v{vT2}, 10, v{vPF}")
        a(f"v_and_b32 v{vT2}, 3, v{vT}")
        a(f"v_lshl_add_u32 v{vPF}, v{vT2}, 7, v{vPF}")
        a(f"s_and_b32 s{sT}, s{sWg}, 1")
        a(f"s_lshl_b32 s{sT}, s{sT}, 9")
        a(f"v_add_u32 v{vPF}, s{sT}, v{vPF}")
        a("s_branch K_pfa_a")
        a.label("K_pfa_x")
        a(f"v_min_u32 v{vT}, 16, v{vLane}")
        a(f"s_mul_i32 s{sT}, s{sT2}, 17")
        a(f"s_and_b32 s{sT2}, s{sWg}, 6")
        a(f"s_lshl_b32 s{sT2}, s{sT2}, 8")
        a(f"s_add_u32 s{sT}, s{sT}, s{sT2}")
        a(f"s_sub_u32 s{sT}, s{sT}, 16")
        a(f"v_add_u32 v{vT}, s{sT}, v{vT}")
        a(f"v_max_i32 v{vT}, 0, v{vT}")
        a(f"v_lshlrev_b32 v{vPF}, 10, v{vT}")
        a.label("K_pfa_a")
    a("s_waitcnt lgkmcnt(0)")
    srd(a, sX, pX, 2097152)
    a(f"buffer_load_dwordx4 {V(vH,4)}, v{vHx}, {S(sX)}, 0 offen"); vm.issue("x")
    a(f"buffer_load_dwordx4 {V(vH+4,4)}, v{vHx}, {S(sX)}, 0 offen offset:1024"); vm.issue("x")
    if PFA:
        a(f"s_cmp_lt_u32 s{sW}, 2")
        a("s_cbranch_scc1 K_pfa_end")
        a(f"s_cmp_eq_u32 s{sW}, 3")
        a(f"s_cselect_b32 s{sPF}, s{pX}, s{pWQ}")
        a(f"s_cselect_b32 s{sPF+1}, s{pX+1}, s{pWQ+1}")
        a(f"s_mov_b32 s{sT}, {512*3072}")
        a(f"s_cselect_b32 s{sPF+2}, 2097152, s{sT}")
        a(f"s_mov_b32 s{sPF+3}, {SRD3}")
        a(f"s_mov_b32 s{sT}, {64*3072}")
        a(f"s_cselect_b32 s{sT2}, 128, s{sT}")
        a(f"s_mov_b32 s{sT}, 0")
        for st in range(8):
            a(f"buffer_load_dword v{vPFd+st}, v{vPF}, {S(sPF)}, s{sT} offen")
            if st < 7: a(f"s_add_u32 s{sT}, s{sT}, s{sT2}")
        a.label("K_pfa_end")
    a(f"s_add_u32 s{sFLs}, s{pWS}, {FL_OFF}")
    a(f"s_addc_u32 s{sFLs+1}, s{pWS+1}, 0")
    a(f"s_load_dword s{sNonce}, {S(sFLs,2)}, 0")
    srd(a, sHB, pWS, H_SIZE, H_OFF)
    srd(a, sST, pWS, ST_SIZE, ST_OFF)
    srd(a, sOT, pWS, OT_SIZE, OT_OFF)
    srd(a, sUT, pWS, UT_SIZE, UT_OFF)
    a(f"s_mov_b32 s{sFLs+2}, {FL_SIZE}")
    a(f"s_mov_b32 s{sFLs+3}, {SRD3}")
    vRX0, vRX1, vRW, vC0, vC1, vC2, vOnes, vOoA = 8, 9, 10, 11, 12, 13, 14, 15
    vSel = 16
    vScW, vScR = 20, 21
    vPo, vPoll = 22, 24
    vAQ, vAK, vAV = 32, 52, 72
    vAccB, vAccC = 232, 32
    vF = [96, 160]
    a(f"v_mov_b32 v{vPo}, 0")
    a(f"v_and_b32 v{vT}, 15, v{vLane}")
    a(f"v_lshrrev_b32 v{vT2}, 4, v{vLane}")
    a(f"v_lshrrev_b32 v{vT3}, 1, v{vT}")
    a(f"v_xor_b32 v{vT3}, v{vT3}, v{vT2}")
    a(f"v_lshlrev_b32 v{vRX0}, 7, v{vT}")
    a(f"v_lshl_add_u32 v{vRX0}, v{vT3}, 4, v{vRX0}")
    a(f"v_xor_b32 v{vRX1}, 64, v{vRX0}")
    a(f"v_bfe_u32 v{vT}, v{vLane}, 2, 2")
    a(f"v_lshl_add_u32 v{vT3}, v{vT2}, 3, v{vT}")
    a(f"v_lshlrev_b32 v{vRW}, 7, v{vT3}")
    a(f"v_lshrrev_b32 v{vT}, 1, v{vT}")
    a(f"v_lshlrev_b32 v{vT}, 1, v{vT}")
    a(f"v_and_b32 v{vT2}, 1, v{vT2}")
    a(f"v_lshl_add_u32 v{vT}, v{vT2}, 2, v{vT}")
    a(f"v_bfe_u32 v{vT2}, v{vLane}, 1, 1")
    a(f"s_lshl_b32 s{sT}, s{sW}, 1")
    a(f"v_add_u32 v{vT2}, s{sT}, v{vT2}")
    a(f"v_xor_b32 v{vT}, v{vT}, v{vT2}")
    a(f"v_lshl_add_u32 v{vRW}, v{vT}, 4, v{vRW}")
    a(f"v_and_b32 v{vT}, 1, v{vLane}")
    a(f"v_lshl_add_u32 v{vRW}, v{vT}, 3, v{vRW}")
    a(f"v_add_u32 v{vRW}, 10240, v{vRW}")
    a(f"v_and_b32 v{vT}, 15, v{vLane}")
    a(f"v_cmp_eq_u32 {S(sM0row,2)}, 0, v{vT}")
    a(f"v_mov_b32 v{vOnes}, 0x3f803f80")
    for i in range(60): a(f"v_mov_b32 v{vAQ+i}, 0")
    a.stamp(1)

    def LN():
        if PFA:
            n = vm.count("x")
            a(f"s_cmp_lt_u32 s{sW}, 2")
            a("s_cbranch_scc1 K_xw0")
            a(f"s_waitcnt vmcnt({n + 8})")
            a("s_branch K_xw1")
            a.label("K_xw0")
            a(f"s_waitcnt vmcnt({n})")
            a.label("K_xw1")
        else: vm.wait("x")
        a.stamp(2)
        E = [vH + 8, vH + 16]
        SU = [vH + 24, vH + 25]; SQ = [vH + 26, vH + 27]; Tm = [vH + 28, vH + 29, vH + 30, vH + 31]
        SA = [vH + 32, vH + 34]; HA = [vH + 36, vH + 37]; HBv = [vH + 38, vH + 39]
        a(f"s_mov_b32 s{sC}, 0x3f803f80")
        for k in range(2):
            a(f"v_mov_b32 v{SU[k]}, 0"); a(f"v_mov_b32 v{SQ[k]}, 0")
        for i in range(4):
            for k in range(2):
                a(f"v_dot2_f32_bf16 v{SU[k]}, v{vH+4*k+i}, s{sC}, v{SU[k]}")
                a(f"v_dot2_f32_bf16 v{SQ[k]}, v{vH+4*k+i}, v{vH+4*k+i}, v{SQ[k]}")
        for k in range(2):
            for i in range(4):
                a(f"v_lshlrev_b32 v{E[k]+2*i}, 16, v{vH+4*k+i}")
                a(f"v_and_b32 v{E[k]+2*i+1}, 0xffff0000, v{vH+4*k+i}")
        wave_reduce(a, SU + SQ, Tm)
        for k in range(2):
            a(f"v_mul_f32 v{SU[k]}, {f2u(1/512):#x}, v{SU[k]}")
            a(f"v_mul_f32 v{SQ[k]}, {f2u(1/512):#x}, v{SQ[k]}")
        for k in range(2): a(f"v_fma_f32 v{SQ[k]}, -v{SU[k]}, v{SU[k]}, v{SQ[k]}")
        for k in range(2): a(f"v_max_f32 v{SQ[k]}, 0, v{SQ[k]}")
        for k in range(2): a(f"v_add_f32 v{SA[k]}, {f2u(EPS):#x}, v{SQ[k]}")
        for k in range(2): a(f"v_rsq_f32 v{SA[k]}, v{SA[k]}")
        for k in range(2):
            a(f"v_mul_f32 v{SA[k]+1}, -v{SU[k]}, v{SA[k]}")
            a(f"v_mul_f32 v{HA[k]}, v{SA[k]}, v{SA[k]}")
        for k in range(2):
            a(f"v_mov_b32 v{HBv[k]}, {f2u(EPS):#x}")
            a(f"v_fmac_f32 v{HBv[k]}, v{HA[k]}, v{SQ[k]}")
        for k in range(2): a(f"v_rsq_f32 v{HBv[k]}, v{HBv[k]}")
        a("s_mov_b64 exec, 1")
        a(f"buffer_store_dwordx4 {V(SA[0],4)}, v{vSo}, {S(sST)}, 0 offen{SC}"); vm.issue("hs")
        a("s_mov_b64 exec, -1")
        for k in range(2):
            a(f"v_mul_f32 v{HA[k]}, v{SA[k]}, v{HBv[k]}")
            a(f"v_mul_f32 v{HBv[k]}, v{SA[k]+1}, v{HBv[k]}")
        for k in range(2):
            for i in range(8): a(f"v_fma_f32 v{E[k]+i}, v{E[k]+i}, v{HA[k]}, v{HBv[k]}")
        for k in range(2):
            for i in range(4): a(f"v_cvt_pk_bf16_f32 v{vH+4*k+i}, v{E[k]+2*i}, v{E[k]+2*i+1}")
        a(f"buffer_store_dwordx4 {V(vH,4)}, v{vHx}, {S(sHB)}, 0 offen{SC}"); vm.issue("hs")
        a(f"buffer_store_dwordx4 {V(vH+4,4)}, v{vHx}, {S(sHB)}, 0 offen offset:1024{SC}"); vm.issue("hs")
        a.stamp(3)
    def setup_misc():
        a(f"s_mul_i32 s{sT}, s{sW}, 2304")
        a(f"s_add_u32 s{sT}, s{sT}, {SCR}")
        a(f"v_and_b32 v{vT}, 15, v{vLane}")
        a(f"v_mul_u32_u24 v{vScW}, 144, v{vT}")
        a(f"v_lshrrev_b32 v{vT2}, 4, v{vLane}")
        a(f"v_lshl_add_u32 v{vScW}, v{vT2}, 3, v{vScW}")
        a(f"v_add_u32 v{vScW}, s{sT}, v{vScW}")
        a(f"v_lshrrev_b32 v{vT}, 3, v{vLane}")
        a(f"v_mul_u32_u24 v{vScR}, 144, v{vT}")
        a(f"v_and_b32 v{vT3}, 7, v{vLane}")
        a(f"v_lshl_add_u32 v{vScR}, v{vT3}, 4, v{vScR}")
        a(f"v_add_u32 v{vScR}, s{sT}, v{vScR}")
        a(f"s_lshl_b32 s{sT2}, s{sW}, 4")
        a(f"s_add_u32 s{sT}, s{sD0}, s{sT2}")
        a(f"v_add_u32 v{vT}, s{sT}, v{vT}")
        a(f"v_lshlrev_b32 v{vOoA}, 12, v{vT}")
        a(f"v_lshl_add_u32 v{vOoA}, v{vT3}, 4, v{vOoA}")
        a(f"s_lshl_b32 s{sT}, s{sS0}, 1")
        a(f"v_add_u32 v{vOoA}, s{sT}, v{vOoA}")
        a(f"v_and_b32 v{vT}, 15, v{vLane}")
        a(f"v_and_b32 v{vT3}, 1, v{vLane}")
        a(f"v_cmp_eq_u32 {S(sOdd,2)}, 1, v{vT3}")
        a(f"v_lshl_add_u32 v{vT2}, v{vT2}, 2, v{vT3}")
        a(f"v_cmp_gt_u32 {S(sC0,2)}, v{vT2}, v{vT}")
        a(f"v_add_u32 v{vT2}, 2, v{vT2}")
        a(f"v_cmp_gt_u32 {S(sC1,2)}, v{vT2}, v{vT}")
        a(f"v_mov_b32 v{vT}, 0x0c0c0100")
        a(f"v_mov_b32 v{vT2}, 0x01000c0c")
        a(f"v_cndmask_b32 v{vT}, v{vT}, v{vT2}, {S(sOdd,2)}")
        a(f"v_mov_b32 v{vT3}, 0x0c0c0c0c")
        a(f"v_cndmask_b32 v{vSel+0}, v{vT3}, v{vT}, {S(sC0,2)}")
        a(f"v_cndmask_b32 v{vSel+2}, v{vT}, v{vT3}, {S(sC0,2)}")
        a(f"v_mov_b32 v{vT}, 0x0c0c0302")
        a(f"v_mov_b32 v{vT2}, 0x03020c0c")
        a(f"v_cndmask_b32 v{vT}, v{vT}, v{vT2}, {S(sOdd,2)}")
        a(f"v_cndmask_b32 v{vSel+1}, v{vT3}, v{vT}, {S(sC1,2)}")
        a(f"v_cndmask_b32 v{vSel+3}, v{vT}, v{vT3}, {S(sC1,2)}")
        a(f"s_cmp_eq_u32 s{sRb}, 0")
        a(f"s_cselect_b32 s{sBias}, {f2u(-1e30):#x}, 0")
    vRP, vRQ, vOoB, vB1 = 28, 29, 30, 31
    def setup_B():
        srd(a, sB1, pB1, 2752)
        a(f"v_lshrrev_b32 v{vT}, 2, v{vLane}")
        a(f"v_lshlrev_b32 v{vRP}, 7, v{vT}")
        a(f"v_bfe_u32 v{vT3}, v{vT}, 1, 2")
        a(f"v_lshlrev_b32 v{vT3}, 1, v{vT3}")
        a(f"v_bfe_u32 v{vT}, v{vLane}, 1, 1")
        a(f"v_and_b32 v{vT2}, 1, v{vLane}")
        a(f"v_lshl_add_u32 v{vRP}, v{vT2}, 3, v{vRP}")
        a(f"s_lshl_b32 s{sT}, s{sW}, 1")
        a(f"v_add_u32 v{vT2}, s{sT}, v{vT}")
        a(f"v_xor_b32 v{vT2}, v{vT2}, v{vT3}")
        a(f"v_lshl_add_u32 v{vRQ}, v{vT2}, 4, v{vRP}")
        a(f"v_xor_b32 v{vT}, v{vT}, v{vT3}")
        a(f"v_lshl_add_u32 v{vRP}, v{vT}, 4, v{vRP}")
        a(f"v_and_b32 v{vT}, 15, v{vLane}")
        a(f"s_lshl_b32 s{sT}, s{sW}, 4")
        a(f"s_add_u32 s{sT}, s{sT}, s{sF0}")
        a(f"v_add_u32 v{vT}, s{sT}, v{vT}")
        a(f"v_lshlrev_b32 v{vB1}, 1, v{vT}")
        a(f"v_lshrrev_b32 v{vT}, 3, v{vLane}")
        a(f"v_add_u32 v{vT}, s{sT}, v{vT}")
        a(f"v_lshlrev_b32 v{vOoB}, 10, v{vT}")
        a(f"v_and_b32 v{vT2}, 7, v{vLane}")
        a(f"v_lshl_add_u32 v{vOoB}, v{vT2}, 4, v{vOoB}")
        a(f"s_lshl_b32 s{sT}, s{sD0c}, 1")
        a(f"v_add_u32 v{vOoB}, s{sT}, v{vOoB}")
        a(f"buffer_load_ushort v{vB1}, v{vB1}, {S(sB1)}, 0 offen"); vm.issue("b1")
        if TOUCH:
            a(f"buffer_load_dword v23, v{vOoB}, {S(sUT)}, 0 offen"); vm.issue("tch")
            a(f"v_add_u32 v{vT}, 8192, v{vOoB}")
            a(f"buffer_load_dword v23, v{vT}, {S(sUT)}, 0 offen"); vm.issue("tch")
        for i in range(16): a(f"v_mov_b32 v{vAccB+i}, 0")
    def post(base, idx_sgpr):
        lab = f"K_post{base:x}"
        a(f"s_cmp_lg_u32 s{sW}, 0")
        a(f"s_cbranch_scc1 {lab}")
        a(f"s_lshl_b32 s{sT}, s{idx_sgpr}, 2")
        a(f"s_add_u32 s{sT}, s{sT}, {base}")
        a(f"v_mov_b32 v{vT}, s{sT}")
        a(f"v_mov_b32 v{vT2}, s{sNonce}")
        a("s_mov_b64 exec, 1")
        a(f"buffer_store_dword v{vT2}, v{vT}, {S(sFLs)}, 0 offen{SC}")
        a("s_mov_b64 exec, -1")
        a.label(lab)
    def poll_addr(kind):
        if kind == "H":
            a(f"v_lshlrev_b32 v{vPo}, 4, v{vLane}")
            a(f"v_add_u32 v{vPo}, {FH}, v{vPo}")
        elif kind == "O":
            a(f"v_and_b32 v{vPo}, 7, v{vLane}")
            a(f"v_lshlrev_b32 v{vPo}, 2, v{vPo}")
            a(f"s_lshl_b32 s{sT}, s{sSb}, 5")
            a(f"s_add_u32 s{sT}, s{sT}, {FO}")
            a(f"v_add_u32 v{vPo}, s{sT}, v{vPo}")
        else:
            a(f"v_min_u32 v{vPo}, 21, v{vLane}")
            a(f"v_lshlrev_b32 v{vPo}, 2, v{vPo}")
            a(f"s_lshl_b32 s{sT}, s{sDb}, 7")
            a(f"s_add_u32 s{sT}, s{sT}, {FU}")
            a(f"v_add_u32 v{vPo}, s{sT}, v{vPo}")
    def poll_load(kind):
        if kind == "H": a(f"buffer_load_dwordx4 {V(vPoll,4)}, v{vPo}, {S(sFLs)}, 0 offen{SC}")
        else: a(f"buffer_load_dword v{vPoll}, v{vPo}, {S(sFLs)}, 0 offen{SC}")
    def poll_issue(kind):
        a(f"s_cmp_lg_u32 s{sW}, 1")
        a(f"s_cbranch_scc1 K_pi{kind}")
        poll_addr(kind); poll_load(kind)
        a.label(f"K_pi{kind}")
    def poll_check(kind):
        a(f"s_cmp_lg_u32 s{sW}, 1")
        a(f"s_cbranch_scc1 K_pd{kind}")
        a(f"s_mov_b32 s{sT2}, 0")
        a.label(f"K_pl{kind}")
        a("s_waitcnt vmcnt(0)")
        if kind == "H":
            for i in range(4): a(f"v_xor_b32 v{vPoll+i}, s{sNonce}, v{vPoll+i}")
            a(f"v_or_b32 v{vPoll}, v{vPoll}, v{vPoll+1}")
            a(f"v_or3_b32 v{vPoll}, v{vPoll}, v{vPoll+2}, v{vPoll+3}")
            a(f"v_cmp_ne_u32 vcc, 0, v{vPoll}")
        else:
            a(f"v_cmp_ne_u32 vcc, s{sNonce}, v{vPoll}")
        a("s_nop 4")
        a(f"s_cbranch_vccz K_pd{kind}")
        a(f"s_add_u32 s{sT2}, s{sT2}, 1")
        a(f"s_cmp_lt_u32 s{sT2}, 0x80000")
        a(f"s_cbranch_scc0 K_pd{kind}")
        poll_load(kind)
        a(f"s_branch K_pl{kind}")
        a.label(f"K_pd{kind}")
    def A_addr(st):
        o = off[("A", st)]
        return [f"v_add_u32 v{vC0}, {o}, v{vRX0}", f"v_add_u32 v{vC1}, {o}, v{vRX1}", f"v_add_u32 v{vC2}, {o}, v{vRW}"]
    def A_reads(F0, st):
        r = []
        for kk in range(2):
            F = F0 + 32 * kk
            for m in range(3):
                r.append(f"ds_read_b64_tr_b16 {V(F+20+4*m,2)}, v{vC2} offset:{m*8192+kk*4096}")
                r.append(f"ds_read_b64_tr_b16 {V(F+20+4*m+2,2)}, v{vC2} offset:{m*8192+kk*4096+512}")
            for t in range(5):
                r.append(f"ds_read_b128 {V(F+4*t,4)}, v{vC0 if kk == 0 else vC1} offset:{t*2048}")
        return r
    def A_pre(F0):
        return [f"v_cndmask_b32 v{F0+32*kk+i}, v{F0+32*kk+i}, v{vOnes}, {S(sM0row,2)}" for kk in range(2) for i in range(4)]
    def A_mfma(F0, st):
        mf = []
        for kk in range(2):
            F = F0 + 32 * kk
            for t in (1, 2, 3, 4, 0):
                mf.append(f"v_mfma_f32_16x16x32_bf16 {V(vAQ+4*t,4)}, {V(F+20,4)}, {V(F+4*t,4)}, {V(vAQ+4*t,4)}")
                mf.append(f"v_mfma_f32_16x16x32_bf16 {V(vAK+4*t,4)}, {V(F+24,4)}, {V(F+4*t,4)}, {V(vAK+4*t,4)}")
                mf.append(f"v_mfma_f32_16x16x32_bf16 {V(vAV+4*t,4)}, {V(F+4*t,4)}, {V(F+28,4)}, {V(vAV+4*t,4)}")
        return mf
    vPt = [vC0, 92, 93, 94]
    BF = [96, 136]
    def B_addr(st):
        return [f"v_add_u32 v{vC0}, {off[('B', st, 'P')]}, v{vRP}", f"v_add_u32 v{vC1}, {off[('B', st, 'Q')]}, v{vRQ}"] + \
               [f"v_xor_b32 v{vPt[t]}, {t*32}, v{vC0}" for t in range(1, 4)]
    def B_reads(F0, st):
        r = []
        for kk in range(2):
            F = F0 + 20 * kk
            r += [f"ds_read_b64_tr_b16 {V(F+16,2)}, v{vC1} offset:{kk*4096}",
                  f"ds_read_b64_tr_b16 {V(F+18,2)}, v{vC1} offset:{kk*4096+2048}"]
            for t in range(4):
                r.append(f"ds_read_b64_tr_b16 {V(F+4*t,2)}, v{vPt[t]} offset:{kk*4096}")
                r.append(f"ds_read_b64_tr_b16 {V(F+4*t+2,2)}, v{vPt[t]} offset:{kk*4096+2048}")
        return r
    def B_mfma(F0, st):
        return [f"v_mfma_f32_16x16x32_bf16 {V(vAccB+4*t,4)}, {V(F0+20*kk+4*t,4)}, {V(F0+20*kk+16,4)}, {V(vAccB+4*t,4)}" for kk in range(2) for t in range(4)]
    vRA, vRB, vXo, vOo, vB2 = 5, 6, 7, 8, 9
    vXP = 224
    def C_addr(st):
        return [f"v_add_u32 v{vC0}, {off[('C', st, 'P')]}, v{vRA}", f"v_add_u32 v{vC1}, {off[('C', st, 'Q')]}, v{vRB}"]
    def C_reads(F, st):
        r = []
        for kk in range(4):
            r += [f"ds_read_b64_tr_b16 {V(F+4*kk,2)}, v{vC0} offset:{kk*2048}",
                  f"ds_read_b64_tr_b16 {V(F+4*kk+2,2)}, v{vC0} offset:{kk*2048+512}",
                  f"ds_read_b64_tr_b16 {V(F+16+4*kk,2)}, v{vC1} offset:{kk*2048}",
                  f"ds_read_b64_tr_b16 {V(F+16+4*kk+2,2)}, v{vC1} offset:{kk*2048+512}"]
        return r
    def C_mfma(F, st):
        return [f"v_mfma_f32_32x32x16_bf16 {V(vAccC,16)}, {V(F+4*kk,4)}, {V(F+16+4*kk,4)}, {V(vAccC,16)}" for kk in range(4)]
    def tile_store(e, src, voff, srdb, step, tmp):
        for t in range(4): e(f"ds_write_b64 v{vScW}, {V(src+2*t,2)} offset:{32*t}")
        e("s_waitcnt lgkmcnt(0)")
        e(f"ds_read_b128 {V(src,4)}, v{vScR}")
        e(f"ds_read_b128 {V(src+4,4)}, v{vScR} offset:{8*144}")
        e(f"v_add_u32 v{tmp}, {step}, v{voff}")
        e("s_waitcnt lgkmcnt(0)")
        e(f"buffer_store_dwordx4 {V(src,4)}, v{voff}, {S(srdb)}, 0 offen{SC}")
        e(f"buffer_store_dwordx4 {V(src+4,4)}, v{tmp}, {S(srdb)}, 0 offen{SC}")
    vStg = 228
    def ST_load():
        a(f"v_min_u32 v{vT}, 39, v{vLane}")
        a(f"s_lshl_b32 s{sT}, s{sS0}, 3")
        a(f"s_sub_u32 s{sT}, s{sT}, 128")
        a(f"v_lshlrev_b32 v{vT}, 4, v{vT}")
        a(f"v_add_u32 v{vT}, s{sT}, v{vT}")
        a(f"buffer_load_dwordx4 {V(vStg,4)}, v{vT}, {S(sST)}, 0 offen{SC}"); vm.issue("st")
    def attention_work():
        G = []
        def grp():
            b = Buf(); G.append(b.l); return b
        x0, x1 = 226, 227
        vVs, vVb, vCsV, vTm = 176, 216, 95, 228
        e = grp()
        e(f"s_mul_i32 s{sC}, s{sW}, 2304")
        e(f"s_add_u32 s{sC}, s{sC}, {SCR}")
        e(f"v_min_u32 v{x0}, 39, v{vLane}")
        e(f"v_lshlrev_b32 v{x0}, 4, v{x0}")
        e(f"v_add_u32 v{x0}, s{sC}, v{x0}")
        e("@WAIT st")
        e(f"ds_write_b128 v{x0}, {V(vStg,4)}")
        e(f"v_lshrrev_b32 v{x1}, 4, v{vLane}")
        e(f"v_lshlrev_b32 v{x1}, 5, v{x1}")
        e(f"v_add_u32 v{x1}, s{sC}, v{x1}")
        e(f"v_and_b32 v{x0}, 15, v{vLane}")
        e(f"v_lshlrev_b32 v{x0}, 3, v{x0}")
        e(f"v_add_u32 v{x0}, s{sC}, v{x0}")
        e("s_waitcnt lgkmcnt(0)")
        for t in range(5):
            e(f"ds_read_b128 {V(vVs+8*t,4)}, v{x1} offset:{128*t}")
            e(f"ds_read_b128 {V(vVs+8*t+4,4)}, v{x1} offset:{128*t+16}")
        e(f"v_mov_b32 v{vCsV}, v{vAV}")
        e(f"v_mov_b32 v{vTm}, v{vCsV}")
        e(f"v_permlane16_swap_b32 v{vCsV}, v{vTm}")
        e(f"v_mov_b32 v{vTm}, v{vCsV}")
        e(f"v_permlane32_swap_b32 v{vCsV}, v{vTm}")
        for t in range(5):
            e = grp()
            for r in range(4): e(f"v_mul_f32 v{vTm+r}, v{vVs+8*t+2*r+1}, v{vCsV}")
            for r in range(4): e(f"v_fma_f32 v{vAV+4*t+r}, v{vVs+8*t+2*r}, v{vAV+4*t+r}, v{vTm+r}")
            e(f"v_cvt_pk_bf16_f32 v{vVb+2*t}, v{vAV+4*t}, v{vAV+4*t+1}")
            e(f"v_cvt_pk_bf16_f32 v{vVb+2*t+1}, v{vAV+4*t+2}, v{vAV+4*t+3}")
        vL, vCsQ, vCsK, vQb, vKb = 176, 186, 190, 192, 202
        e = grp()
        for t in range(5): e(f"ds_read_b64 {V(vL+2*t,2)}, v{x0} offset:{128*t}")
        for r in range(4):
            e(f"v_mov_b32_dpp v{vCsQ+r}, v{vAQ+r} row_newbcast:0 row_mask:0xf bank_mask:0xf")
            e(f"v_mov_b32_dpp v{vCsK+r}, v{vAK+r} row_newbcast:0 row_mask:0xf bank_mask:0xf")
        e("s_waitcnt lgkmcnt(0)")
        for (acc, cs, dst, tiles) in ((vAQ, vCsQ, vQb, range(1, 5)), (vAK, vCsK, vKb, range(5))):
            for t in tiles:
                e = grp()
                for r in range(4): e(f"v_mul_f32 v{vTm+r}, v{vL+2*t+1}, v{cs+r}")
                for r in range(4): e(f"v_fma_f32 v{acc+4*t+r}, v{vL+2*t}, v{acc+4*t+r}, v{vTm+r}")
                e(f"v_cvt_pk_bf16_f32 v{dst+2*t}, v{acc+4*t}, v{acc+4*t+1}")
                e(f"v_cvt_pk_bf16_f32 v{dst+2*t+1}, v{acc+4*t+2}, v{acc+4*t+3}")
        vSP, vSC = vAQ, vAK
        e = grp()
        for t in range(1, 5):
            e(f"v_mfma_f32_16x16x16_bf16 {V(vSP+4*t,4)}, {V(vKb+2*(t-1),2)}, {V(vQb+2*t,2)}, 0")
            e(f"v_mfma_f32_16x16x16_bf16 {V(vSC+4*t,4)}, {V(vKb+2*t,2)}, {V(vQb+2*t,2)}, 0")
        vS0 = [176 + i for i in range(4)]; vS1 = [180 + i for i in range(4)]
        vU = [184 + i for i in range(4)]; vMx = [188 + i for i in range(4)]; vTt = [192 + i for i in range(4)]
        vP = [196 + 4*i for i in range(4)]
        vOa = [72 + 4*i for i in range(4)]
        T = range(1, 5)
        e = grp()
        for t in T:
            i = t - 1
            e(f"v_cndmask_b32 v{vS0[i]}, v{vSP+4*t}, v{vSP+4*t+1}, {S(sOdd,2)}")
            e(f"v_cndmask_b32 v{vS1[i]}, v{vSP+4*t+2}, v{vSP+4*t+3}, {S(sOdd,2)}")
            e(f"v_cndmask_b32 v{vU[i]}, v{vSC+4*t}, v{vSC+4*t+1}, {S(sOdd,2)}")
            e(f"v_cndmask_b32 v{vMx[i]}, v{vSC+4*t+2}, v{vSC+4*t+3}, {S(sOdd,2)}")
        e(f"v_add_f32 v{vS0[0]}, s{sBias}, v{vS0[0]}")
        e(f"v_add_f32 v{vS1[0]}, s{sBias}, v{vS1[0]}")
        e = grp()
        for i in range(4):
            e(f"v_cndmask_b32 v{vS0[i]}, v{vU[i]}, v{vS0[i]}, {S(sC0,2)}")
            e(f"v_cndmask_b32 v{vS1[i]}, v{vMx[i]}, v{vS1[i]}, {S(sC1,2)}")
        for i in range(4): e(f"v_max_f32 v{vMx[i]}, v{vS0[i]}, v{vS1[i]}")
        e = grp(); xrow_reduce(e, vMx, vTt, "v_max_f32")
        e = grp()
        e(f"s_mov_b32 s{sC}, {f2u(0.25 * 1.4426950408889634):#x}")
        for i in range(4): e(f"v_mul_f32 v{vMx[i]}, s{sC}, v{vMx[i]}")
        for i in range(4):
            e(f"v_fma_f32 v{vS0[i]}, v{vS0[i]}, s{sC}, -v{vMx[i]}")
            e(f"v_fma_f32 v{vS1[i]}, v{vS1[i]}, s{sC}, -v{vMx[i]}")
        for i in range(4):
            e(f"v_exp_f32 v{vS0[i]}, v{vS0[i]}")
            e(f"v_exp_f32 v{vS1[i]}, v{vS1[i]}")
        for i in range(4): e(f"v_add_f32 v{vU[i]}, v{vS0[i]}, v{vS1[i]}")
        e = grp(); xrow_reduce(e, vU, vTt)
        e = grp()
        for i in range(4): e(f"v_rcp_f32 v{vU[i]}, v{vU[i]}")
        for i in range(4):
            e(f"v_mul_f32 v{vS0[i]}, v{vS0[i]}, v{vU[i]}")
            e(f"v_mul_f32 v{vS1[i]}, v{vS1[i]}, v{vU[i]}")
        for i in range(4): e(f"v_cvt_pk_bf16_f32 v{vTt[i]}, v{vS0[i]}, v{vS1[i]}")
        e = grp()
        for i in range(4):
            for k in range(4): e(f"v_perm_b32 v{vP[i]+k}, v{vTt[i]}, v{vTt[i]}, v{vSel+k}")
        for t in T:
            i = t - 1
            e(f"v_mfma_f32_16x16x32_bf16 {V(vOa[i],4)}, {V(vP[i],4)}, {V(vVb+2*(t-1),4)}, 0")
        vO = 176
        e = grp()
        for i in range(4):
            e(f"v_cvt_pk_bf16_f32 v{vO+2*i}, v{vOa[i]}, v{vOa[i]+1}")
            e(f"v_cvt_pk_bf16_f32 v{vO+2*i+1}, v{vOa[i]+2}, v{vOa[i]+3}")
        tile_store(e, vO, vOoA, sOT, 8 * 4096, x0)
        e("@ISSUE ot"); e("@ISSUE ot")
        return G
    def C_setup():
        sWd, sWs = 56, 57
        srd(a, sB2, pB2, 4096)
        srd(a, sOUT, pOUT, 2097152)
        a(f"s_and_b32 s{sWd}, s{sW}, 1")
        a(f"s_lshr_b32 s{sWs}, s{sW}, 1")
        a(f"v_lshrrev_b32 v{vT}, 5, v{vLane}")
        a(f"v_lshlrev_b32 v{vT}, 3, v{vT}")
        a(f"v_bfe_u32 v{vT2}, v{vLane}, 2, 2")
        a(f"v_add_u32 v{vT}, v{vT}, v{vT2}")
        a(f"v_lshlrev_b32 v{vRA}, 7, v{vT}")
        a(f"v_bfe_u32 v{vT}, v{vLane}, 4, 1")
        a(f"v_lshlrev_b32 v{vT}, 1, v{vT}")
        a(f"v_bfe_u32 v{vT3}, v{vLane}, 1, 1")
        a(f"v_add_u32 v{vT}, v{vT}, v{vT3}")
        a(f"v_lshrrev_b32 v{vT2}, 1, v{vT2}")
        a(f"v_lshlrev_b32 v{vT2}, 2, v{vT2}")
        a(f"v_xor_b32 v{vT}, v{vT}, v{vT2}")
        a(f"v_and_b32 v{vT3}, 1, v{vLane}")
        a(f"v_lshlrev_b32 v{vT3}, 3, v{vT3}")
        a(f"v_add_u32 v{vRA}, v{vRA}, v{vT3}")
        a(f"s_lshl_b32 s{sT}, s{sWd}, 2")
        a(f"v_xor_b32 v{vT2}, s{sT}, v{vT}")
        a(f"v_lshl_add_u32 v{vT3}, v{vT2}, 4, v{vRA}")
        a(f"s_lshl_b32 s{sT}, s{sWs}, 2")
        a(f"v_xor_b32 v{vT2}, s{sT}, v{vT}")
        a(f"v_lshl_add_u32 v{vRB}, v{vT2}, 4, v{vRA}")
        a(f"v_mov_b32 v{vRA}, v{vT3}")
        a(f"v_and_b32 v{vT}, 31, v{vLane}")
        a(f"s_lshl_b32 s{sT}, s{sWs}, 5")
        a(f"s_add_u32 s{sT}, s{sT}, s{sS0c}")
        a(f"v_add_u32 v{vT}, s{sT}, v{vT}")
        a(f"v_lshlrev_b32 v{vB2}, 1, v{vT}")
        a(f"v_lshlrev_b32 v{vT}, 10, v{vT}")
        a(f"s_lshl_b32 s{sT}, s{sWd}, 5")
        a(f"s_add_u32 s{sT}, s{sT}, s{sD0c}")
        a(f"s_lshl_b32 s{sT}, s{sT}, 1")
        a(f"v_add_u32 v{vT}, s{sT}, v{vT}")
        a(f"v_lshrrev_b32 v{vT2}, 5, v{vLane}")
        a(f"v_lshl_add_u32 v{vXo}, v{vT2}, 3, v{vT}")
        a(f"v_lshl_add_u32 v{vOo}, v{vT2}, 4, v{vT}")
    def E_B():
        vO = 224
        a.stamp2(3)
        a(f"v_lshlrev_b32 v{vB1}, 16, v{vB1}")
        c1 = -2.0 * 1.4426950408889634 * 0.7978845608028654
        c2 = c1 * 0.044715
        a(f"s_mov_b32 s{sC1g}, {f2u(c1):#x}")
        a(f"s_mov_b32 s{sC2g}, {f2u(c2):#x}")
        a(f"v_mov_b32 v{vT3}, s{sC1g}")
        tm = 176; n = 16; A = vAccB
        for i in range(n): a(f"v_add_f32 v{A+i}, v{A+i}, v{vB1}")
        for i in range(n): a(f"v_mul_f32 v{tm+i}, v{A+i}, v{A+i}")
        for i in range(n): a(f"v_fma_f32 v{tm+i}, v{tm+i}, s{sC2g}, v{vT3}")
        for i in range(n): a(f"v_mul_f32 v{tm+i}, v{tm+i}, v{A+i}")
        for i in range(n): a(f"v_exp_f32 v{tm+i}, v{tm+i}")
        for i in range(n): a(f"v_add_f32 v{tm+i}, 1.0, v{tm+i}")
        for i in range(n): a(f"v_rcp_f32 v{tm+i}, v{tm+i}")
        for i in range(n): a(f"v_mul_f32 v{A+i}, v{A+i}, v{tm+i}")
        for t in range(4):
            a(f"v_cvt_pk_bf16_f32 v{vO+2*t}, v{A+4*t}, v{A+4*t+1}")
            a(f"v_cvt_pk_bf16_f32 v{vO+2*t+1}, v{A+4*t+2}, v{A+4*t+3}")
        a(f"s_cmp_eq_u32 s{sHasB}, 0")
        a("s_cbranch_scc1 K_bskip")
        tile_store(a, vO, vOoB, sUT, 8 * 1024, vT)
        a.label("K_bskip")
        a.stamp2(4)
        for i in range(16): a(f"v_mov_b32 v{vAccC+i}, 0")
        vm.drain()
        a.stamp2(6)
    def C_pre_loads():
        for q in range(4):
            a(f"buffer_load_dwordx2 {V(vXP+2*q,2)}, v{vXo}, {S(sX)}, 0 offen offset:{16*q}"); vm.issue("xp")
        a(f"buffer_load_ushort v{vB2}, v{vB2}, {S(sB2)}, 0 offen"); vm.issue("xp")
    def E_C():
        vO = 96
        vm.drain()
        a(f"v_lshlrev_b32 v{vB2}, 16, v{vB2}")
        for q in range(4):
            for h in range(2):
                x = vXP + 2*q + h
                a(f"v_lshlrev_b32 v{vT}, 16, v{x}")
                a(f"v_and_b32 v{vT2}, 0xffff0000, v{x}")
                a(f"v_add_f32 v{vT}, v{vT}, v{vB2}")
                a(f"v_add_f32 v{vT2}, v{vT2}, v{vB2}")
                a(f"v_add_f32 v{vT}, v{vT}, v{vAccC+4*q+2*h}")
                a(f"v_add_f32 v{vT2}, v{vT2}, v{vAccC+4*q+2*h+1}")
                a(f"v_cvt_pk_bf16_f32 v{vO+2*q+h}, v{vT}, v{vT2}")
        for p in range(2):
            a(f"v_permlane32_swap_b32 v{vO+4*p}, v{vO+4*p+2}")
            a(f"v_permlane32_swap_b32 v{vO+4*p+1}, v{vO+4*p+3}")
        for p in range(2):
            a(f"buffer_store_dwordx4 {V(vO+4*p,4)}, v{vOo}, {S(sOUT)}, 0 offen offset:{32*p}")
        a(f"s_or_b32 s{sT}, s{sWg}, s{sW}")
        a(f"s_cmp_lg_u32 s{sT}, 0")
        a("s_cbranch_scc1 K_noep")
        a(f"v_mov_b32 v{vT}, 0")
        a(f"v_mov_b32 v{vT2}, s{sNonce}")
        a("s_mov_b64 exec, 1")
        a(f"buffer_store_dword v{vT2}, v{vT}, {S(sFLs)}, 0 offen")
        a("s_mov_b64 exec, -1")
        a.label("K_noep")
    def emit_group(g):
        for t in g:
            if t.startswith("@WAIT "): vm.wait(t.split()[1])
            elif t.startswith("@ISSUE "): vm.issue(t.split()[1])
            else: a(t)
    work = attention_work()
    k_ot_done = None
    setidx = {}; par = 0
    for k, (rd, mm, ep) in enumerate(intervals):
        a("s_barrier")
        if k < 60: a.stamp(4 + k)
        else: a.stamp2(k - 60, 248)
        if k == K_POST_H: rt(a, 41)
        if k == K_CHK_H + 1: rt(a, 42)
        if k == K_POST_U: rt(a, 43)
        if k == K_CHK_U + 1: rt(a, 44)
        if k == K_POST_H: post(FH, sFi)
        if k_ot_done is not None and k == k_ot_done + 2: post(FO, sFi)
        if k == K_POST_U:
            a(f"s_cmp_eq_u32 s{sHasB}, 0")
            a("s_cbranch_scc1 K_nopostu")
            a(f"s_lshl_b32 s{sC}, s{sDb}, 5")
            a(f"s_add_u32 s{sC}, s{sC}, s{sFb}")
            post(FU, sC)
            a.label("K_nopostu")
            C_pre_loads()
        if k == K_CHK_H - 1: poll_issue("H")
        if k == K_CHK_O - 1: poll_issue("O")
        if k == K_POST_U: poll_issue("U")
        if k == K_CHK_H + 1: ST_load()
        rs = []; ms = []
        if rd:
            ph, st = rd
            setidx[rd] = par; F = (BF if ph == "B" else vF)[par]; par ^= 1
            for t in {"A": A_addr, "B": B_addr, "C": C_addr}[ph](st): a(t)
            rs = {"A": A_reads, "B": B_reads, "C": C_reads}[ph](F, st)
        if mm:
            ph, st = mm; F = (BF if ph == "B" else vF)[setidx[mm]]
            if ph == "A":
                for t in A_pre(F): a(t)
            ms = {"A": A_mfma, "B": B_mfma, "C": C_mfma}[ph](F, st)
        if ms:
            per = -(-len(rs) // len(ms)); ri = 0
            for m in ms:
                a(m)
                for r in rs[ri:ri+per]: a(r)
                ri += per
        else:
            for r in rs: a(r)
        if k == 0:
            LN()
            a("s_waitcnt lgkmcnt(0)")
            a(f"s_add_u32 s{sNonce}, s{sNonce}, 1")
            a(f"s_lshl_b32 s{sFi}, s{sRb}, 3")
            a(f"s_add_u32 s{sFi}, s{sFi}, s{sHg}")
        if k == 3: setup_misc()
        if k == 4: setup_B()
        if k >= K_EA0 and work:
            n = 0
            while work and n < CHUNK:
                g = work.pop(0); emit_group(g); n += len(g)
            if not work: k_ot_done = k
        if k_ot_done is not None and k == k_ot_done + 1:
            vm.wait("ot")
            C_setup()
        if ep == "B": E_B()
        if ep == "C": E_C()
        if k == K_POST_H - 1: vm.wait("hs")
        if k == K_CHK_H: poll_check("H")
        if k == K_CHK_O: poll_check("O")
        if k == K_CHK_U: poll_check("U")
        if rs: a("s_waitcnt lgkmcnt(0)")
    assert k_ot_done + 2 < K_CHK_O - 1, (k_ot_done, K_CHK_O)
    print("attention work done in interval", k_ot_done, file=sys.stderr)
    a.stamp2(20, 248); rt(a, 45)
    a.stamp_dump(0, pWS, 251, 8, sW, 62)
    if a.stamps:
        a("v_mov_b32 v250, v249"); a.stamp_dump(1, pWS, 251, 8, sW, 62)
        a("v_mov_b32 v250, v248"); a.stamp_dump(2, pWS, 251, 8, sW, 62)
    a("s_endpgm")

def producer(a, off, issue):
    vLane, vT, vT2, vT3 = 1, 2, 3, 4
    sX, sWq, sHB, sW1, sWO, sOT, sUT, sW2 = 8, 12, 16, 20, 24, 28, 32, 36
    sK0, sK1, sK2, sK3, sMX, sMWb, sMC = 56, 57, 58, 59, 86, 87, 90
    sRA, sRB, sRC1, sRC2 = 91, 92, 93, 94
    vm = VM(a)
    vX0, vW0 = 5, 8
    vBP0, vBP1, vBQ0, vBQ1 = 10, 11, 12, 13
    vP0, vP1, vQ0, vQ1 = 17, 18, 19, 20
    a(f"s_and_b32 s{sW}, s{sW}, 3")
    a(f"v_lshrrev_b32 v{vT}, 3, v{vLane}")
    a(f"s_lshl_b32 s{sT}, s{sW}, 3")
    a(f"s_add_u32 s{sT}, s{sT}, s{sS0}")
    a(f"s_sub_u32 s{sT}, s{sT}, 16")
    a(f"v_add_u32 v{vT}, s{sT}, v{vT}")
    a(f"v_lshlrev_b32 v{vT}, 10, v{vT}")
    a(f"v_lshrrev_b32 v{vT2}, 4, v{vLane}")
    a(f"s_and_b32 s{sT}, s{sW}, 1")
    a(f"s_lshl_b32 s{sT}, s{sT}, 2")
    a(f"v_add_u32 v{vT2}, s{sT}, v{vT2}")
    a(f"v_and_b32 v{vT3}, 7, v{vLane}")
    a(f"v_xor_b32 v{vT2}, v{vT2}, v{vT3}")
    a(f"v_lshl_add_u32 v{vX0}, v{vT2}, 4, v{vT}")
    a(f"v_add_u32 v{vX0+1}, 32768, v{vX0}")
    a(f"v_add_u32 v{vX0+2}, 65536, v{vX0}")
    a(f"s_lshl_b32 s{sMX}, s{sW}, 10")
    a(f"v_lshrrev_b32 v{vT}, 3, v{vLane}")
    a(f"s_lshl_b32 s{sT}, s{sW}, 4")
    a(f"v_add_u32 v{vT}, s{sT}, v{vT}")
    a(f"v_mul_u32_u24 v{vT}, 3072, v{vT}")
    a(f"s_lshl_b32 s{sT}, s{sHg}, 7")
    a(f"v_add_u32 v{vT}, s{sT}, v{vT}")
    a(f"v_bfe_u32 v{vT2}, v{vLane}, 4, 1")
    a(f"v_lshlrev_b32 v{vT2}, 1, v{vT2}")
    a(f"v_xor_b32 v{vT2}, v{vT2}, v{vT3}")
    a(f"v_lshl_add_u32 v{vW0}, v{vT2}, 4, v{vT}")
    a(f"v_xor_b32 v{vT2}, 4, v{vT2}")
    a(f"v_lshl_add_u32 v{vW0+1}, v{vT2}, 4, v{vT}")
    a(f"v_add_u32 v{vW0+1}, {8*3072}, v{vW0+1}")
    a(f"s_lshl_b32 s{sMWb}, s{sW}, 11")
    a(f"s_add_u32 s{sMWb}, s{sMWb}, 10240")
    a(f"s_lshr_b32 s{sRA}, s{sWg}, 5")
    if ROTA == 0: a(f"s_mov_b32 s{sRA}, 0")
    a(f"s_lshr_b32 s{sRB}, s{sWg}, 6")
    a(f"s_mul_i32 s{sRB}, s{sRB}, 11")
    a(f"s_lshl_b32 s{sRC1}, s{sDb}, 2")
    a(f"s_add_u32 s{sRB}, s{sRB}, s{sRC1}")
    a(f"s_lshr_b32 s{sRC1}, s{sWg}, 6")
    a(f"s_lshl_b32 s{sRC1}, s{sRC1}, 1")
    a(f"s_add_u32 s{sRC1}, s{sRC1}, s{sDb}")
    a(f"s_mul_i32 s{sRC2}, s{sDb}, 11")
    a(f"s_lshr_b32 s{sRC2}, s{sRC2}, 2")
    a("s_waitcnt lgkmcnt(0)")
    srd(a, sX, pX, 2097152)
    srd(a, sWq, pWQ, 512 * 3072)
    a.stamp(1)
    lab = [0]
    def dma_A(u):
        t = u[1]; base = off[u]
        a(f"s_add_u32 s{sK3}, s{sRA}, {t}")
        a(f"s_and_b32 s{sK3}, s{sK3}, 7")
        a(f"s_lshl_b32 s{sK0}, s{sK3}, 7")
        a(f"s_mul_i32 s{sK1}, s{sK3}, {64*3072}")
        a(f"s_add_u32 s{sK2}, s{sK1}, 1024")
        a(f"s_add_u32 s{sK3}, s{sK1}, 2048")
        lab[0] += 1
        a(f"s_cmp_ge_u32 s{sW}, 2")
        a(f"s_cbranch_scc1 K_xs{lab[0]}")
        a(f"s_add_u32 m0, s{sMX}, {base + 8192}")
        a(f"buffer_load_dwordx4 v{vX0+2}, {S(sX)}, s{sK0} offen lds")
        a.label(f"K_xs{lab[0]}")
        for jj in range(2):
            a(f"s_add_u32 m0, s{sMX}, {base + jj*4096}")
            a(f"buffer_load_dwordx4 v{vX0+jj}, {S(sX)}, s{sK0} offen lds"); vm.issue(u)
        for m, sk in enumerate((sK1, sK2, sK3)):
            for e in range(2):
                a(f"s_add_u32 m0, s{sMWb}, {base + m*8192 + e*1024}")
                a(f"buffer_load_dwordx4 v{vW0+e}, {S(sWq)}, s{sk} offen lds"); vm.issue(u)
    def setup_BC():
        srd(a, sW1, pW1, 2048 * 2752)
        srd(a, sHB, pWS, H_SIZE, H_OFF)
        srd(a, sWO, pWO, 524288)
        srd(a, sW2, pW2, 1376 * 4096)
        srd(a, sOT, pWS, OT_SIZE, OT_OFF)
        srd(a, sUT, pWS, UT_SIZE, UT_OFF)
        a(f"s_lshl_b32 s{sMC}, s{sW}, 11")
        a(f"v_lshrrev_b32 v{vT}, 3, v{vLane}")
        a(f"s_lshl_b32 s{sT}, s{sW}, 4")
        a(f"v_add_u32 v{vT}, s{sT}, v{vT}")
        a(f"v_and_b32 v{vT3}, 7, v{vLane}")
        a(f"v_lshrrev_b32 v{vT2}, 4, v{vLane}")
        a(f"v_lshlrev_b32 v{vT2}, 1, v{vT2}")
        a(f"v_xor_b32 v{vT2}, v{vT2}, v{vT3}")
        a(f"v_lshlrev_b32 v{vT2}, 4, v{vT2}")
        a(f"s_lshl_b32 s{sT}, s{sD0c}, 1")
        a(f"v_lshl_add_u32 v{vBP0}, v{vT}, 10, v{vT2}")
        a(f"v_add_u32 v{vBP0}, s{sT}, v{vBP0}")
        a(f"v_add_u32 v{vBP1}, 8192, v{vBP0}")
        a(f"v_mul_u32_u24 v{vBQ0}, 2752, v{vT}")
        a(f"v_add_u32 v{vBQ0}, v{vBQ0}, v{vT2}")
        a(f"s_lshl_b32 s{sT}, s{sF0}, 1")
        a(f"v_add_u32 v{vBQ0}, s{sT}, v{vBQ0}")
        a(f"v_add_u32 v{vBQ1}, {8*2752}, v{vBQ0}")
        a(f"v_bfe_u32 v{vT2}, v{vLane}, 4, 1")
        a(f"v_lshlrev_b32 v{vT2}, 2, v{vT2}")
        a(f"v_xor_b32 v{vT2}, v{vT2}, v{vT3}")
        a(f"v_lshlrev_b32 v{vT2}, 4, v{vT2}")
        a(f"s_lshl_b32 s{sT}, s{sD0c}, 1")
        a(f"v_lshl_add_u32 v{vP0}, v{vT}, 10, v{vT2}")
        a(f"v_add_u32 v{vP0}, s{sT}, v{vP0}")
        a(f"v_add_u32 v{vP1}, 8192, v{vP0}")
        a(f"s_lshl_b32 s{sT}, s{sS0c}, 1")
        a(f"v_lshl_add_u32 v{vQ0}, v{vT}, 12, v{vT2}")
        a(f"v_add_u32 v{vQ0}, s{sT}, v{vQ0}")
        a(f"v_add_u32 v{vQ1}, 32768, v{vQ0}")
    def dma_half(u):
        ph, t, half = u; base = off[u]
        if ph == "B":
            a(f"s_add_u32 s{sK0}, s{sRB}, {t}")
            a(f"s_and_b32 s{sK0}, s{sK0}, 31")
            if half == "P": regs, sr, stride, sc = (vBP0, vBP1), sHB, 65536, SC
            else: regs, sr, stride, sc = (vBQ0, vBQ1), sW1, 64 * 2752, ""
        elif t < 8:
            a(f"s_add_u32 s{sK0}, s{sRC1}, {t}")
            a(f"s_and_b32 s{sK0}, s{sK0}, 7")
            if half == "P": regs, sr, stride, sc = (vP0, vP1), sWO, 65536, ""
            else: regs, sr, stride, sc = (vQ0, vQ1), sOT, 262144, SC
        else:
            a(f"s_add_u32 s{sK0}, s{sRC2}, {t - 8}")
            a(f"s_sub_u32 s{sK1}, s{sK0}, 22")
            a(f"s_cmp_ge_u32 s{sK0}, 22")
            a(f"s_cselect_b32 s{sK0}, s{sK1}, s{sK0}")
            if half == "P": regs, sr, stride, sc = (vP0, vP1), sUT, 65536, SC
            else: regs, sr, stride, sc = (vQ0, vQ1), sW2, 262144, ""
        a(f"s_mul_i32 s{sK0}, s{sK0}, {stride}")
        for j in range(2):
            a(f"s_add_u32 m0, s{sMC}, {base + j*1024}")
            a(f"buffer_load_dwordx4 v{regs[j]}, {S(sr)}, s{sK0} offen{sc} lds"); vm.issue(u)
    def do_issue(u):
        if u[0] == "A": dma_A(u)
        else: dma_half(u)
    for u in issue[-1]: do_issue(u)
    a.stamp(2)
    setup_BC()
    a.stamp(3)
    for k, (rd, mm, ep) in enumerate(intervals):
        if rd:
            if rd[0] == "A": vm.wait(rd)
            else: vm.wait((rd[0], rd[1], "P"), (rd[0], rd[1], "Q"))
        if k < 12: a.stamp2(k)
        a("s_barrier")
        for u in issue[k]: do_issue(u)
        if k < 60: a.stamp(4 + k)
        else: a.stamp2(k - 60, 248)
    if a.stamps:
        a(f"s_add_u32 s{sW}, s{sW}, 4")
        a.stamp_dump(0, pWS, 251, 8, sW, 62)
        a("v_mov_b32 v250, v248"); a.stamp_dump(2, pWS, 251, 8, sW, 62)
        a("v_mov_b32 v250, v249"); a.stamp_dump(1, pWS, 251, 8, sW, 62)
    a("s_endpgm")

def emit(out):
    name = NAME + "_kernel"
    hdr = open("cdna_kernels/" + NAME + ".s.ref").read().split("; Override")[0]
    a, nv, ns, lds = kernel()
    body = a.finish()
    print("instrs", len(a.lines), "nops", a.count_nops(), "lds", lds, file=sys.stderr)
    txt = hdr + f"; @launch grid=(256,1,1) block=(512,1,1) lds={lds}\n"
    txt += '.amdgcn_target "amdgcn-amd-amdhsa--gfx950"\n.text\n'
    txt += f".globl {name}\n.p2align 8\n.type {name},@function\n{name}:\n{body}"
    txt += f""".section .rodata,"a"
.p2align 6
.amdhsa_kernel {name}
  .amdhsa_next_free_vgpr {nv}
  .amdhsa_next_free_sgpr {ns}
  .amdhsa_accum_offset {nv}
  .amdhsa_group_segment_fixed_size 0
  .amdhsa_kernarg_size 88
  .amdhsa_user_sgpr_count 2
  .amdhsa_user_sgpr_kernarg_segment_ptr 1
  .amdhsa_system_sgpr_workgroup_id_x 1
  .amdhsa_float_denorm_mode_32 3
.end_amdhsa_kernel
"""
    open(out, "w").write(txt)

if __name__ == "__main__":
    if "--stamps" in sys.argv:
        Asm.stamps = True; sys.argv.remove("--stamps")
    emit(sys.argv[1] if len(sys.argv) > 1 else "cdna_kernels/" + NAME + ".s")
```
